```python
import torch

def _softmax(x, axis=-1):
    return torch.softmax(x, dim=axis)
def _gelu(x):
    return torch.nn.functional.gelu(x, approximate="tanh")
def _silu(x):
    return torch.nn.functional.silu(x)
def _sigmoid(x):
    return torch.sigmoid(x)
def _layernorm(x, axis=-1, eps=1e-5):
    m = x.mean(dim=axis, keepdim=True)
    v = x.var(dim=axis, keepdim=True, unbiased=False)
    return (x - m) / torch.sqrt(v + eps)
def _scatter_add(tgt, idx, src, axis=0):
    return tgt.clone().index_add_(axis, idx, src)
def _segment_sum(src, seg, n):
    out = torch.zeros((n,) + src.shape[1:], dtype=src.dtype)
    return out.index_add_(0, seg, src)
def _pad(x, pw):
    flat = tuple(v for pair in reversed(pw) for v in pair)
    return torch.nn.functional.pad(x, flat)

kernel_name = 'recurrent_scan__ssm_conv_s5__dense_activation_gelu__prompt'

def setup_inputs():

    _w = (lambda a: (lambda t: t.to(torch.bfloat16) if t.is_floating_point() else t)(torch.as_tensor(a)))
    def _A_setup():
        B, S, D = 1, 2048, 576
        P = D
        Lambda_re = -0.5 * (lambda _x: torch.exp(torch.as_tensor(_x)))((lambda *s: torch.randn(*s, dtype=torch.bfloat16) * 0.4)(P))
        Lambda_im = (lambda *s: torch.randn(*s, dtype=torch.bfloat16) * 0.8)(P) * 1.0
        B_re = (lambda *s: torch.randn(*s, dtype=torch.bfloat16) * 0.8)(P, D) * (D ** -0.5)
        B_im = (lambda *s: torch.randn(*s, dtype=torch.bfloat16) * 0.8)(P, D) * (D ** -0.5)
        C_re = (lambda *s: torch.randn(*s, dtype=torch.bfloat16) * 0.8)(D, P) * (P ** -0.5)
        C_im = (lambda *s: torch.randn(*s, dtype=torch.bfloat16) * 0.8)(D, P) * (P ** -0.5)
        log_dt = (lambda *s: torch.randn(*s, dtype=torch.bfloat16) * 0.4)(P) * 0.3 - 2.0
        Dskip = (lambda *s: torch.randn(*s, dtype=torch.bfloat16) * 0.2)(D)
        return {
            "x": _w((lambda *s: torch.randn(*s, dtype=torch.bfloat16) * 0.05)(B, S, D)),
            "Lambda_re": _w(Lambda_re),
            "Lambda_im": _w(Lambda_im),
            "B_re": _w(B_re),
            "B_im": _w(B_im),
            "C_re": _w(C_re),
            "C_im": _w(C_im),
            "log_dt": _w(log_dt),
            "Dskip": _w(Dskip),
        }
    _A_in = _A_setup()

    def _B_setup():
        B, S, D, F = 1, 2048, 576, 4608
        return {
            "x": _w((lambda *s: torch.randn(*s, dtype=torch.bfloat16) * 0.05)(B, S, D)),
            "w1": _w((lambda *s: torch.randn(*s, dtype=torch.bfloat16) * 0.8)(D, F) * (D ** -0.5)),
            "b1": _w((lambda *s: torch.randn(*s, dtype=torch.bfloat16) * 12.8)(F) * 0.01),
            "w2": _w((lambda *s: torch.randn(*s, dtype=torch.bfloat16) * 0.8)(F, D) * (F ** -0.5)),
            "b2": _w((lambda *s: torch.randn(*s, dtype=torch.bfloat16) * 6.4)(D) * 0.01),
        }
    _B_in = _B_setup()

    return {
        "A_x": _A_in["x"],
        "A_Lambda_re": _A_in["Lambda_re"],
        "A_Lambda_im": _A_in["Lambda_im"],
        "A_B_re": _A_in["B_re"],
        "A_B_im": _A_in["B_im"],
        "A_C_re": _A_in["C_re"],
        "A_C_im": _A_in["C_im"],
        "A_log_dt": _A_in["log_dt"],
        "A_Dskip": _A_in["Dskip"],
        "B_x": _B_in["x"],
        "B_w1": _B_in["w1"],
        "B_b1": _B_in["b1"],
        "B_w2": _B_in["w2"],
        "B_b2": _B_in["b2"],
    }

def reference(A_x, A_Lambda_re, A_Lambda_im, A_B_re, A_B_im, A_C_re, A_C_im, A_log_dt, A_Dskip, B_x, B_w1, B_b1, B_w2, B_b2):
    def _A_ref(x, Lambda_re, Lambda_im, B_re, B_im, C_re, C_im, log_dt, Dskip):
        Bsz, L, H = x.shape
        Lam = Lambda_re + 1j * Lambda_im
        Bmat = B_re + 1j * B_im
        Cmat = C_re + 1j * C_im
        dt = torch.exp(log_dt)
        Lam_bar = torch.exp(dt * Lam)
        B_bar = ((Lam_bar - 1.0) / Lam)[:, None] * Bmat
        Bu = torch.einsum("bld,pd->blp", x + 0j, B_bar)
        h = torch.zeros_like(Bu[:, 0, :])
        hs = []
        for t in range(L):
            h = Lam_bar[None, :] * h + Bu[:, t, :]
            hs.append(h)
        hseq = torch.stack(hs, 1)
        y = 2.0 * torch.einsum("blp,dp->bld", hseq, Cmat).real + x * Dskip[None, None, :]
        return y

    def _B_ref(x, w1, b1, w2, b2):
        h = torch.einsum("bsd,df->bsf", x, w1) + b1
        h = _gelu(h)
        return torch.einsum("bsf,fd->bsd", h, w2) + b2

    x = A_x
    xn = _layernorm(x, axis=-1)
    s = _A_ref(xn, A_Lambda_re, A_Lambda_im, A_B_re, A_B_im, A_C_re, A_C_im, A_log_dt, A_Dskip)
    g = _silu(_B_ref(xn, B_w1, B_b1, B_w2, B_b2))
    return x + s * g
```

```python
import struct
from emit import Emitter, Fillers, V, S

WS_P = 0
WS_STATS = 0x2400000
WS_E = 0x2410000

sW, sRG, sHF, sRB, sJ = 3, 4, 5, 6, 7
SRD_X, SRD_A, SRD_B, SRD_C, SRD_P, SRD_E, SRD_F = 8, 12, 16, 20, 24, 28, 32
sW1K, sONES, sPI = 36, 37, 38
sT0 = 40
KA = 48


def ka(i):
    return KA + 2 * i


def f32(x):
    return "0x%08x" % struct.unpack("<I", struct.pack("<f", x))[0]


class AddrSet:
    def __init__(self, em, regs, base=0):
        self.em, self.regs, self.base = em, list(regs), base

    def imm(self, addr, span=8192):
        if not (addr >= self.base and addr + span - self.base <= 65536):
            d = (addr - self.base) & 0xFFFFFFFF
            for r in self.regs:
                self.em.op(f"v_add_u32 v{r}, 0x{d:x}, v{r}")
            self.base = addr
        return addr - self.base


class TempS:
    def __init__(self, lo=sT0, n=8):
        self.lo, self.n, self.i = lo, n, 0

    def get(self):
        r = self.lo + self.i
        self.i = (self.i + 1) % self.n
        return r


def srd(em, dst, ptr, off_sgpr, nrec):
    if off_sgpr is None:
        em.op(f"s_mov_b32 s{dst}, s{ptr}")
        em.op(f"s_mov_b32 s{dst+1}, s{ptr+1}")
    else:
        em.op(f"s_add_u32 s{dst}, s{ptr}, {off_sgpr}")
        em.op(f"s_addc_u32 s{dst+1}, s{ptr+1}, 0")
    em.op(f"s_mov_b32 s{dst+2}, {nrec}")
    em.op(f"s_mov_b32 s{dst+3}, 0x00020000")


GELU_C1 = -2.0 * 0.7978845608028654 * 1.4426950408889634
GELU_C2 = GELU_C1 * 0.044715
LOG2E = 1.4426950408889634
INV2PI = 0.15915494309189535


class Stamps:
    def __init__(self, em, on):
        self.em, self.on, self.n = em, on, 0
        self.names = []

    def stamp(self, name=""):
        if not self.on:
            return
        em = self.em
        em.raw("  s_memtime s[84:85]")
        em.raw("  s_waitcnt lgkmcnt(0)")
        em.lg = []
        em.pos += 2
        em.raw(f"  v_writelane_b32 v3, s84, {self.n}")
        em.pos += 1
        self.names.append(name)
        self.n += 1

    def dump(self):
        if not self.on:
            return
        em = self.em
        em.op("s_lshl_b32 s40, s2, 3")
        em.op(f"s_add_u32 s40, s40, s{sW}")
        em.op("s_lshl_b32 s40, s40, 8")
        em.op("s_add_u32 s40, s40, 0x2500000")
        srd(em, 88, ka(16), "s40", 256)
        em.op("v_mbcnt_lo_u32_b32 v1, -1, 0")
        em.op("v_mbcnt_hi_u32_b32 v1, -1, v1")
        em.op("v_lshlrev_b32 v1, 2, v1")
        em.op("buffer_store_dword v3, v1, s[88:91], 0 offen")
        print("stamps:", self.names)
```

```python
import re, copy

REG_RE = re.compile(r"^(-|\|)?([vs])(\d+)\|?$")
RNG_RE = re.compile(r"^(-|\|)?([vs])\[(\d+):(\d+)\]\|?$")
TRANS = ("v_exp_f32", "v_log_f32", "v_rcp_f32", "v_rsq_f32", "v_sqrt_f32", "v_sin_f32", "v_cos_f32")


def regs_of(tok):
    tok = tok.strip()
    m = REG_RE.match(tok)
    if m:
        return [(m.group(2), int(m.group(3)))]
    m = RNG_RE.match(tok)
    if m:
        return [(m.group(2), i) for i in range(int(m.group(3)), int(m.group(4)) + 1)]
    if tok == "vcc":
        return [("s", 106), ("s", 107)]
    if tok == "vcc_lo":
        return [("s", 106)]
    if tok == "vcc_hi":
        return [("s", 107)]
    if tok == "exec":
        return [("s", 126), ("s", 127)]
    if tok == "m0":
        return [("s", 124)]
    return []


def V(a, n=1):
    return f"v{a}" if n == 1 else f"v[{a}:{a+n-1}]"


def S(a, n=1):
    return f"s{a}" if n == 1 else f"s[{a}:{a+n-1}]"


class Emitter:
    def __init__(self):
        self.lines = []
        self.pos = 0
        self.wr = {}
        self.srcc = {}
        self.stdata = {}
        self.vm = []
        self.lg = []
        self.nnop = 0
        self.stats = {}
        self.lastmfma = None

    def fork_state(self):
        return copy.deepcopy((self.pos, self.wr, self.srcc, self.stdata, self.vm, self.lg))

    def set_state(self, st):
        self.pos, self.wr, self.srcc, self.stdata, self.vm, self.lg = copy.deepcopy(st)

    def raw(self, text):
        self.lines.append(text)

    def comment(self, text):
        self.lines.append("  ; " + text)

    def label(self, name):
        self.lines.append(name + ":")

    def nop(self, n):
        while n > 0:
            k = min(n, 16)
            self.lines.append(f"  s_nop {k-1}")
            self.pos += k
            self.nnop += k
            n -= k

    def _count(self, key):
        self.stats[key] = self.stats.get(key, 0) + 1

    def waitcnt(self, vm=None, lg=None):
        parts = []
        if vm is not None and vm < len(self.vm):
            assert vm <= 63
            parts.append(f"vmcnt({vm})")
            self.vm = self.vm[len(self.vm) - vm:] if vm else []
        if lg is not None and lg < len(self.lg):
            assert lg <= 15
            parts.append(f"lgkmcnt({lg})")
            self.lg = self.lg[len(self.lg) - lg:] if lg else []
        if parts:
            self.lines.append("  s_waitcnt " + " ".join(parts))
            self.pos += 1
            self._count("waitcnt")

    def wait_tag(self, tags, lg0=False):
        if not isinstance(tags, (list, tuple, set)):
            tags = [tags]
        idx = -1
        for i, (t, _) in enumerate(self.vm):
            if t in tags:
                idx = i
        vm = None
        if idx >= 0:
            vm = min(63, len(self.vm) - 1 - idx)
        self.waitcnt(vm=vm, lg=0 if lg0 else None)

    def wait_lg_tag(self, tags):
        if not isinstance(tags, (list, tuple, set)):
            tags = [tags]
        idx = -1
        for i, (t, _) in enumerate(self.lg):
            if t in tags:
                idx = i
        if idx >= 0:
            self.waitcnt(lg=min(15, len(self.lg) - 1 - idx))

    def barrier(self):
        self.lines.append("  s_barrier")
        self.pos += 1

    def parse(self, text):
        t = text.strip()
        mn, _, rest = t.partition(" ")
        ops = []
        cur = ""
        depth = 0
        for ch in rest:
            if ch == "[":
                depth += 1
            if ch == "]":
                depth -= 1
            if ch == "," and depth == 0:
                ops.append(cur.strip())
                cur = ""
            else:
                cur += ch
        mods = []
        if cur.strip():
            sp = cur.strip().split()
            ops.append(sp[0])
            mods = sp[1:]
        return mn, ops, mods

    def op(self, text, tag=None):
        mn, ops, mods = self.parse(text)
        base = re.sub(r"_(e32|e64|sdwa|dpp)$", "", mn)
        R = [regs_of(o) for o in ops]
        flat = lambda L: [r for x in L for r in x]
        reads, writes = [], []
        kind = None
        srcc = []
        if base.startswith("v_mfma"):
            kind = "mfma8" if "32x32" in base else "mfma4"
            writes = R[0]
            reads = flat(R[1:3])
            srcc = R[3]
        elif base.startswith("v_cmp"):
            kind = "valu"
            writes = R[0]
            reads = flat(R[1:])
        elif base in ("v_permlane32_swap_b32", "v_permlane16_swap_b32"):
            kind = "perm"
            writes = flat(R[0:2])
            reads = flat(R[0:2])
        elif base.startswith("v_"):
            kind = "trans" if base in TRANS else ("dot" if base.startswith("v_dot") else "valu")
            if mn.endswith("_sdwa"):
                kind = "sdwa"
            writes = R[0]
            reads = flat(R[1:])
            if base.startswith("v_fmac") or base.startswith("v_dot2c") or base.startswith("v_pk_fmac"):
                reads = reads + R[0]
            if base == "v_cndmask_b32" and len(ops) == 3:
                reads = reads + regs_of("vcc")
        elif base.startswith("ds_read") or base.startswith("ds_bpermute") or base.startswith("ds_permute"):
            kind = "ds"
            writes = R[0]
            reads = flat(R[1:])
        elif base.startswith("ds_"):
            kind = "ds"
            reads = flat(R)
        elif base.startswith("buffer_load"):
            kind = "vmem"
            if "lds" in mods:
                reads = flat(R) + regs_of("m0")
            else:
                writes = R[0]
                reads = flat(R[1:])
                if "d16" in base:
                    reads = reads + R[0]
        elif base.startswith("buffer_"):
            kind = "vmem"
            reads = flat(R)
        elif base.startswith("s_load"):
            kind = "smem"
            writes = R[0]
            reads = flat(R[1:])
        elif base.startswith("s_"):
            kind = "salu"
            if base.startswith(("s_cmp", "s_cbranch", "s_branch", "s_setprio", "s_sleep", "s_endpgm", "s_bitcmp")):
                reads = flat(R)
            else:
                writes = R[0]
                reads = flat(R[1:])
        else:
            raise ValueError("unknown instruction " + text)

        touched = set(reads) | set(writes) | set(srcc)
        needv = needl = None
        for i, (_, d) in enumerate(self.vm):
            if d & touched:
                needv = len(self.vm) - 1 - i
        for i, (_, d) in enumerate(self.lg):
            if d & touched:
                needl = len(self.lg) - 1 - i
        if needv is not None:
            needv = min(needv, 63)
        if needl is not None:
            needl = min(needl, 15)
        if needv is not None or needl is not None:
            self.waitcnt(vm=needv, lg=needl)

        need = 0

        def req(p, ws):
            nonlocal need
            need = max(need, p + 1 + ws)

        isvalu = kind in ("valu", "trans", "dot", "perm", "sdwa")
        ismfma = kind in ("mfma8", "mfma4")
        for r in set(reads) | set(srcc):
            w = self.wr.get(r)
            if not w:
                continue
            p, k = w[0], w[1]
            if r[0] == "v":
                if k in ("valu", "trans", "perm", "sdwa", "dot"):
                    if ismfma:
                        req(p, 3 if k == "dot" else 2)
                    if kind == "perm":
                        req(p, 3 if k == "dot" else 2)
                    if base in ("v_readfirstlane_b32", "v_readlane_b32"):
                        req(p, 1)
                    if k == "trans" and (isvalu or kind in ("vmem", "ds")):
                        req(p, 1)
                    if k == "sdwa" and isvalu:
                        req(p, 1)
                    if k == "dot":
                        same_acc = (kind == "dot" and w[2] == base and r in writes and r not in flat(R[1:3]))
                        if not same_acc:
                            req(p, 3)
                    if "dpp" in mn:
                        req(p, 2)
                elif k in ("mfma8", "mfma4"):
                    n = 12 if k == "mfma8" else 8
                    if ismfma and r in srcc and r not in reads:
                        exact = (w[2] == tuple(srcc)) and k == kind
                        if not exact:
                            req(p, n - 2)
                    else:
                        req(p, n)
            else:
                if k in ("valu", "trans", "perm", "sdwa", "dot"):
                    if kind == "vmem":
                        req(p, 5)
                    elif isvalu:
                        req(p, 4 if base in ("v_readlane_b32", "v_writelane_b32") else 2)
                    elif kind == "salu":
                        req(p, 3)
                if k == "salu" and r == ("s", 124) and kind == "vmem":
                    req(p, 1)
        for r in writes:
            if r[0] != "v":
                continue
            w = self.wr.get(r)
            if w:
                p, k = w[0], w[1]
                if k in ("mfma8", "mfma4"):
                    n = 12 if k == "mfma8" else 8
                    if ismfma:
                        if not (r in srcc and w[2] == tuple(srcc) and k == kind):
                            req(p, n - 2)
                    else:
                        req(p, n)
                if k == "dot" and not (kind == "dot" and w[2] == base):
                    req(p, 3)
                if k == "sdwa" and isvalu:
                    req(p, 1)
            if r in self.srcc and not ismfma:
                req(self.srcc[r], 7)
            if r in self.stdata:
                req(self.stdata[r], 2)
        if need > self.pos:
            self.nop(need - self.pos)

        self.lines.append("  " + text.strip())
        self._count(kind)
        me = self.pos
        self.pos += 1
        for r in writes:
            if kind in ("vmem", "ds", "smem"):
                self.wr.pop(r, None)
            elif ismfma:
                self.wr[r] = (me, kind, tuple(writes))
            else:
                self.wr[r] = (me, kind, base)
        for r in srcc:
            self.srcc[r] = me
        if kind == "vmem":
            self.vm.append((tag, set(writes)))
            if base.startswith("buffer_store") and ("x4" in base or "x3" in base):
                for r in R[0]:
                    self.stdata[r] = me
        elif kind == "ds":
            self.lg.append((tag, set(writes)))
        elif kind == "smem":
            raise ValueError("use smem() for scalar loads")

    def smem_block(self, texts):
        for t in texts:
            self.lines.append("  " + t)
            self.pos += 1
        self.lines.append("  s_waitcnt lgkmcnt(0)")
        self.pos += 1
        self.lg = []

    def text(self):
        return "\n".join(self.lines) + "\n"


class Fillers:
    def __init__(self, em):
        self.em = em
        self.q = []

    def add(self, items):
        self.q.extend(items)

    def add_front(self, items):
        self.q[0:0] = list(items)

    def emit(self, n):
        while n > 0 and self.q:
            it = self.q.pop(0)
            if callable(it):
                it()
            elif isinstance(it, tuple):
                self.em.op(it[0], tag=it[1])
            else:
                self.em.op(it)
            n -= 1

    def flush(self):
        self.emit(1 << 30)

    def __len__(self):
        return len(self.q)


class Ctl:
    def __init__(self, kind, arg):
        self.kind, self.arg = kind, arg


def WAIT_SLOT(n):
    return Ctl("wait", n)


def GAP(k):
    return Ctl("gap", k)


def RATE(r):
    return Ctl("rate", r)


def DONE(name):
    return Ctl("done", name)


def UNTIL(fn):
    return Ctl("until", fn)


def BAR():
    return Ctl("bar", None)


class Sched:
    def __init__(self, em):
        self.em = em
        self.q = []
        self.cur = 0
        self.hold = 0
        self.done = set()
        self.rate = 5.0
        self.credit = 0.0
        self.forced = 0
        self.nbar = 0
        self.log = []

    def add(self, items):
        self.q.extend(items)

    def add_front(self, items):
        self.q[0:0] = list(items)

    def _emit(self, it):
        if callable(it):
            it()
        elif isinstance(it, tuple):
            self.em.op(it[0], tag=it[1])
        else:
            self.em.op(it)

    def run(self, k):
        spent = 0
        while self.q:
            it = self.q[0]
            if isinstance(it, Ctl):
                if it.kind == "wait":
                    if self.cur < it.arg:
                        break
                elif it.kind == "until":
                    if not it.arg():
                        break
                elif it.kind == "bar":
                    if it.arg is None:
                        it.arg = self.nbar
                    if self.nbar <= it.arg:
                        break
                elif it.kind == "gap":
                    self.hold = self.cur + it.arg
                elif it.kind == "done":
                    self.done.add(it.arg)
                    self.log.append((it.arg, self.cur))
                elif it.kind == "rate":
                    self.rate = it.arg
                self.q.pop(0)
                continue
            if self.cur < self.hold:
                break
            txt = it if isinstance(it, str) else (it[0] if isinstance(it, tuple) else "")
            c = 2 if txt.startswith(TRANS) or txt.startswith("v_mfma") else 1
            if spent + c > k:
                break
            self.q.pop(0)
            self._emit(it)
            spent += c
        return spent

    def tick(self, scale=1.0):
        self.run(0)
        self.credit = min(self.credit + self.rate * scale, self.rate + 1.99)
        self.credit -= self.run(int(self.credit))

    def flush_until(self, name=None):
        if name is not None and name in self.done:
            return
        if name is not None:
            assert any(isinstance(i, Ctl) and i.kind == "done" and i.arg == name for i in self.q), name
        while self.q:
            it = self.q.pop(0)
            if isinstance(it, Ctl):
                if it.kind == "wait":
                    assert self.cur >= it.arg, ("flush across wait", it.arg, self.cur, name)
                elif it.kind == "until":
                    assert it.arg(), ("flush across until", self.cur, name)
                elif it.kind == "bar":
                    assert it.arg is not None and self.nbar > it.arg, ("flush across barrier", self.cur, name)
                elif it.kind == "done":
                    self.log.append((it.arg, self.cur))
                    self.done.add(it.arg)
                    if it.arg == name:
                        return
                elif it.kind == "rate":
                    self.rate = it.arg
                continue
            self.forced += 1
            if name is not None:
                print("   forced filler before", name, "at slot", self.cur, ":", it if isinstance(it, (str, tuple)) else "fn")
            self._emit(it)

    def flush(self):
        self.flush_until(None)


class Multi:
    def __init__(self, em, n, rate):
        self.qs = [Sched(em) for _ in range(n)]
        for q in self.qs[1:]:
            q.done = self.qs[0].done
            q.log = self.qs[0].log
        self.done = self.qs[0].done
        self.rate = rate
        self.credit = 0.0
        self.res = 1

    def set_cur(self, c):
        for q in self.qs:
            q.cur = c

    def barrier(self):
        for q in self.qs:
            q.run(0)
        for q in self.qs:
            q.nbar += 1

    def tick(self, scale=1.0):
        for q in self.qs:
            q.run(0)
        self.credit = min(self.credit + self.rate * scale, self.rate + 1.99)
        self.credit -= self.qs[-1].run(min(self.res, int(self.credit)))
        for q in self.qs:
            self.credit -= q.run(int(self.credit))

    def need(self, name):
        if name in self.done:
            return
        for q in self.qs:
            if any(isinstance(i, Ctl) and i.kind == "done" and i.arg == name for i in q.q):
                q.flush_until(name)
                return
        raise AssertionError(("missing", name))

    def flush(self):
        for q in self.qs:
            q.flush()
```

```python
from common import *
from emit import Sched, WAIT_SLOT, GAP, DONE, RATE

RING, NPOS, HX, MISC = 0, 13, 106496, 155648
CS, ST = MISC, MISC + 2048
NBUF = 4

vX0, vX1, vW1, vW2 = 4, 5, 6, 7
aQ, aW, aBo, aBp = 8, 12, 16, 17
vK1, vK2, vBc, vAc = 18, 19, 20, 22
vCSa = 24
vOB1, aCSw, aCSr, aHXw, aHXp, vP = 1, 2, 28, 29, 30, 31
SEL = 252
BUF = 32
vST = 48
ACC = [52, 68, 196, 212]
vH3 = 84
TG = 92
TX = 100
Q = 108
STG = [228, 236]


def lane_x_addr(em):
    em.op(f"s_lshl_b32 s40, s{sW}, 4")
    em.op("v_lshrrev_b32 v101, 3, v0")
    em.op("v_add_u32 v101, s40, v101")
    em.op("v_mul_u32_u24 v101, 0x480, v101")
    em.op("v_and_b32 v102, 7, v0")
    em.op("v_lshrrev_b32 v103, 4, v0")
    em.op("v_xor_b32 v102, v102, v103")
    em.op(f"v_lshl_add_u32 v{vX0}, v102, 4, v101")
    em.op(f"v_xor_b32 v{vX1}, 64, v{vX0}")
    em.op(f"v_add_u32 v{vX1}, 0x2400, v{vX1}")


def x_dma(em, cb, dst, gi):
    def f():
        em.op(f"s_add_u32 m0, s39, {dst + 1024*gi - 128*cb}")
        em.op(f"buffer_load_dwordx4 v{(vX0, vX1)[gi]}, s[{SRD_X}:{SRD_X+3}], 0 offen offset:{128*cb} lds", tag=("sig", cb))
    return f


def q_addr(em, regs):
    em.op("v_and_b32 v101, 31, v0")
    em.op(f"s_lshl_b32 s40, s{sRG}, 5")
    em.op("v_add_u32 v102, s40, v101")
    em.op("v_bfe_u32 v101, v0, 1, 3")
    em.op("v_lshrrev_b32 v103, 5, v0")
    em.op("v_xor_b32 v101, v101, v103")
    em.op(f"s_lshl_b32 s40, s{sPI}, 1")
    em.op("v_xor_b32 v101, s40, v101")
    em.op("v_lshlrev_b32 v101, 4, v101")
    em.op(f"v_lshl_add_u32 v{regs[0]}, v102, 7, v101")
    for i in (1, 2, 3):
        em.op(f"v_xor_b32 v{regs[i]}, {32*i}, v{regs[0]}")


def stats_finalize(tx, vneg, k1=None, k2=None, vr=None, vpack=None):
    s, q, t, u = tx, tx + 1, tx + 2, tx + 3
    L = [
        f"v_add_f32 v{tx}, v{tx}, v{tx+2}",
        f"v_add_f32 v{tx+1}, v{tx+1}, v{tx+3}",
        f"v_add_f32 v{tx+4}, v{tx+4}, v{tx+6}",
        f"v_add_f32 v{tx+5}, v{tx+5}, v{tx+7}",
        f"v_add_f32 v{s}, v{tx}, v{tx+4}",
        f"v_add_f32 v{q}, v{tx+1}, v{tx+5}",
        f"v_mul_f32 v{s}, {f32(1/576)}, v{s}",
        f"v_mul_f32 v{q}, {f32(1/576)}, v{q}",
        f"v_cvt_pk_bf16_f32 v{vneg}, -v{s}, -v{s}",
        f"v_fma_f32 v{q}, -v{s}, v{s}, v{q}",
        f"v_max_f32 v{q}, 0, v{q}",
        f"v_cvt_pk_bf16_f32 v{t}, v{q}, v{q}",
        f"v_lshlrev_b32 v{t}, 16, v{t}",
        f"v_add_f32 v{t}, {f32(1e-5)}, v{t}",
        f"v_cvt_pk_bf16_f32 v{t}, v{t}, v{t}",
        f"v_lshlrev_b32 v{t}, 16, v{t}",
        f"v_sqrt_f32 v{t}, v{t}",
        f"v_cvt_pk_bf16_f32 v{vneg+1}, v{t}, 0",
        f"v_lshlrev_b32 v{t}, 16, v{vneg+1}",
    ]
    r = vr if vr is not None else u
    L += [f"v_rcp_f32 v{r}, v{t}"]
    if vpack is not None:
        L += [f"v_and_b32 v{vpack}, 0xffff, v{vneg}", f"v_or_b32 v{vpack}, v{vpack}, v{t}"]
    if k1 is not None:
        L += [
            f"v_mul_f32 v{k1}, {f32(GELU_C1)}, v{r}",
            f"v_mul_f32 v{t}, v{r}, v{r}",
            f"v_mul_f32 v{k2}, {f32(0.044715)}, v{k1}",
            f"v_mul_f32 v{k2}, v{k2}, v{t}",
        ]
    return L


def sel_setup(em, sel):
    em.op(f"v_lshrrev_b32 v{sel}, 2, v0")
    em.op(f"v_xor_b32 v{sel}, v{sel}, v0")
    em.op(f"v_bfe_u32 v{sel}, v{sel}, 2, 1")
    em.op(f"v_add_u32 v{sel}, -1, v{sel}")
    em.op(f"v_and_b32 v{sel}, s{sONES}, v{sel}")
    for i in (1, 2, 3):
        em.op(f"v_mov_b32 v{sel+i}, v{sel}")


def hilo(tx, dst):
    return [
        f"v_add_f32 v{tx}, v{tx}, v{tx+1}",
        f"v_cvt_pk_bf16_f32 v{tx+1}, v{tx}, v{tx}",
        f"v_lshlrev_b32 v{tx+1}, 16, v{tx+1}",
        f"v_sub_f32 v{tx+2}, v{tx}, v{tx+1}",
        f"v_cvt_pk_bf16_f32 v{dst}, v{tx+1}, v{tx+2}",
    ]


def gelu(acc, out, mid=None, end=None):
    ops = [lambda t, a: f"v_mul_f32 v{t}, v{a}, v{a}",
           lambda t, a: f"v_fma_f32 v{t}, v{t}, v{vK2}, v{vK1}",
           lambda t, a: f"v_mul_f32 v{t}, v{t}, v{a}",
           lambda t, a: f"v_exp_f32 v{t}, v{t}",
           lambda t, a: f"v_add_f32 v{t}, 1.0, v{t}",
           lambda t, a: f"v_rcp_f32 v{t}, v{t}",
           lambda t, a: f"v_mul_f32 v{t}, v{t}, v{a}"]
    L = []
    for s in range(16 + 7):
        e = s - 8
        if e >= 0 and e % 2 == 0:
            L.append(f"v_cvt_pk_bf16_f32 v{out+e//2}, v{TG+e%8}, v{TG+(e+1)%8}")
        if s == 16 and mid:
            L += mid
        for k in (0, 3, 1, 2, 5, 4, 6):
            e = s - k
            if 0 <= e < 16:
                L.append(ops[k](TG + e % 8, acc + e))
        if s == 21 and end:
            L += end
    return L


def triple(k):
    return [HX, HX + 24576, RING + 81920, RING + 8192, RING + 32768, RING + 57344][k % 6]


def mlp_path(em, cfg):
    D = cfg.get("D", 3)
    RA = cfg.get("rateA", 5.3)
    STMOD = cfg.get("stmod", "sc1")
    N1, N2 = cfg.get("n1", 3), cfg.get("n2", 6)
    ts = TempS()
    SP = Stamps(em, cfg.get("stamps", False))
    SP.stamp("start")
    em.op(f"s_mul_i32 s40, s{sJ}, 768")
    em.op(f"s_sub_u32 s41, {576*9216}, s40")
    srd(em, SRD_A, ka(10), "s40", "s41")
    em.op(f"s_lshl_b32 s42, s{sW}, 3")
    em.op("v_lshrrev_b32 v101, 3, v0")
    em.op("v_add_u32 v101, s42, v101")
    em.op("v_and_b32 v102, 7, v0")
    em.op("v_bfe_u32 v103, v0, 4, 1")
    em.op("v_lshlrev_b32 v103, 2, v103")
    em.op("v_xor_b32 v102, v102, v103")
    em.op("v_lshlrev_b32 v102, 4, v102")
    em.op(f"v_mul_u32_u24 v{vW1}, 0x2400, v101")
    em.op(f"v_add_u32 v{vW1}, v{vW1}, v102")
    em.op(f"v_mul_u32_u24 v{vW2}, 0x480, v101")
    em.op(f"v_add_u32 v{vW2}, v{vW2}, v102")

    orderB = [(0, 0), (1, 0), (2, 0), (3, 0), (0, 1), (1, 1), (2, 1), (3, 1)]
    for dp in range(4, 9):
        orderB += [(dp, 0), (dp, 1)]
    NSIG = 108

    def pos_addr(sig):
        return triple(sig) + 16384 if sig < 9 else RING + 8192 * ((sig - 9) % NPOS)

    def w_dma(sig):
        if sig < 54:
            p, kb = divmod(sig, 9)
            so, v, sr = 64 * kb * 9216 + 128 * p, vW1, SRD_A
        else:
            ci, a = divmod(sig - 54, 3)
            dp, half = orderB[ci]
            so, v, sr = 64 * (3 * half + a) * 1152 + 128 * dp, vW2, SRD_B

        def f():
            t = ts.get()
            em.op(f"s_add_u32 m0, s{sW1K}, {pos_addr(sig)}")
            em.op(f"s_mov_b32 s{t}, {so}")
            em.op(f"buffer_load_dwordx4 v{v}, s[{sr}:{sr+3}], s{t} offen lds", tag=("sig", sig))
        return f

    DQ = []
    for kb in range(9):
        e = -1 if kb < 6 else kb - 4
        DQ += [(e, kb, x_dma(em, kb, triple(kb), 0)), (e, kb, x_dma(em, kb, triple(kb), 1)), (e, kb, w_dma(kb))]
    for sig in range(9, NSIG):
        e = -1 if sig == 9 else (5 + (sig - 10) // 3 if sig < 19 else max(10, sig - 11))
        DQ.append((e, sig, w_dma(sig)))
    lastbar = [-1]

    def dma_issue(k):
        c = 0
        while DQ and c < k and DQ[0][0] <= lastbar[0]:
            DQ.pop(0)[2]()
            c += 1
        return c

    dma_issue(3 * N1)
    em.op(f"s_mul_i32 s40, s{sJ}, {384*1152}")
    srd(em, SRD_B, ka(12), "s40", 384 * 1152)
    em.op(f"s_mul_i32 s40, s{sJ}, 768")
    srd(em, SRD_C, ka(11), "s40", 768)
    em.op(f"s_lshl_b32 s40, s{sRB}, 4")
    em.op(f"s_add_u32 s40, s40, s{sJ}")
    em.op("s_lshl_b32 s40, s40, 2")
    em.op(f"s_add_u32 s40, s40, s{sRG}")
    em.op("s_mul_i32 s40, s40, 36864")
    srd(em, SRD_P, ka(16), "s40", 36864)
    em.op(f"s_lshl_b32 s40, s{sRB}, 9")
    em.op(f"s_lshl_b32 s41, s{sRG}, 7")
    em.op("s_add_u32 s40, s40, s41")
    em.op(f"s_add_u32 s40, s40, {WS_STATS}")
    em.op(f"s_or_b32 s41, s{sJ}, s{sHF}")
    em.op("s_cmp_eq_u32 s41, 0")
    em.op("s_cselect_b32 s41, 128, 0")
    srd(em, SRD_E, ka(16), "s40", "s41")
    q_addr(em, [aQ + i for i in range(4)])
    em.op("v_bfe_u32 v101, v0, 2, 2")
    em.op("v_lshrrev_b32 v102, 1, v101")
    em.op(f"v_xor_b32 v102, s{sHF}, v102")
    em.op("v_lshlrev_b32 v102, 6, v102")
    em.op("v_lshl_add_u32 v101, v101, 7, v102")
    em.op("v_bfe_u32 v102, v0, 4, 1")
    em.op("v_lshl_add_u32 v101, v102, 5, v101")
    em.op("v_and_b32 v102, 3, v0")
    em.op("v_lshl_add_u32 v101, v102, 3, v101")
    em.op("v_lshrrev_b32 v102, 5, v0")
    em.op("v_lshl_add_u32 v103, v102, 10, v101")
    em.op(f"s_lshl_b32 s40, s{sPI}, 11")
    em.op(f"v_add_u32 v{aW}, s40, v103")
    for b in (1, 2, 3):
        em.op(f"v_xor_b32 v{aW+b}, {2048*b}, v{aW}")
    em.op("v_lshl_add_u32 v103, v102, 9, v101")
    em.op(f"s_lshl_b32 s40, s{sHF}, 12")
    em.op(f"v_add_u32 v{aBo}, s40, v103")
    em.op(f"v_xor_b32 v{aBp}, 0x1000, v{aBo}")
    em.op("v_and_b32 v101, 31, v0")
    em.op(f"s_lshl_b32 s40, s{sHF}, 6")
    em.op("v_lshl_add_u32 v103, v101, 1, s40")
    em.op(f"v_lshl_add_u32 v{vOB1}, v102, 16, v103")
    em.op(f"s_lshl_b32 s40, s{sHF}, 9")
    em.op(f"s_add_u32 s40, s40, {CS}")
    em.op("v_lshl_add_u32 v103, v101, 4, s40")
    em.op(f"v_lshl_add_u32 v{aCSr}, v102, 3, v103")
    em.op(f"s_lshl_b32 s41, s{sRG}, 2")
    em.op(f"v_add_u32 v{aCSw}, s41, v103")
    sel_setup(em, SEL)
    em.op(f"s_mul_i32 s40, s{sW}, 6144")
    em.op(f"s_add_u32 s40, s40, {HX}")
    em.op(f"v_lshl_add_u32 v{aHXw}, v0, 4, s40")
    em.op(f"s_xor_b32 s41, s{sW}, 4")
    em.op("s_mul_i32 s41, s41, 6144")
    em.op(f"s_add_u32 s41, s41, {HX}")
    em.op(f"v_lshl_add_u32 v{aHXp}, v0, 4, s41")
    em.op(f"s_lshl_b32 s40, s{sHF}, 11")
    em.op(f"v_lshl_add_u32 v{vP}, v0, 4, s40")
    em.op(f"s_lshl_b32 s40, s{sRG}, 10")
    em.op(f"s_add_u32 s40, s40, {ST}")
    em.op("v_lshl_add_u32 v50, v101, 5, s40")
    em.op(f"s_lshl_b32 s41, s{sHF}, 4")
    em.op("v_lshl_add_u32 v51, v102, 3, v50")
    em.op("v_add_u32 v51, s41, v51")
    for r in (vST, vST + 1):
        em.op(f"v_mov_b32 v{r}, 0")
    em.op(f"buffer_load_ushort v{vAc+1}, v{vOB1}, s[{SRD_C}:{SRD_C+3}], 0 offen")

    dma_issue(3 * (N2 - N1))

    AQ = AddrSet(em, [aQ + i for i in range(4)])
    AW = AddrSet(em, [aW + i for i in range(4)])
    AB = AddrSet(em, [aBo, aBp])

    def Hreg(o, p, s):
        if p < 3:
            return 124 + (p * 2 + o) * 8 + 4 * s
        if o == 0:
            return {3: vH3, 4: 108, 5: 116}[p] + 4 * s
        return 172 + (p - 3) * 8 + 4 * s

    accB = {}
    for dp in range(9):
        accB[dp] = ACC[[0, 2, 3, 1][dp % 4]]

    steps = []
    for p in range(6):
        for kb in range(9):
            for b in range(4):
                steps.append(dict(ph="A", sig=9 * p + kb, b=b, p=p, kb=kb))
    for ci, (dp, half) in enumerate(orderB):
        for a in range(3):
            for o in range(2):
                for s in range(2):
                    steps.append(dict(ph="B", sig=54 + 3 * ci + a, dp=dp, half=half, a=a, o=o, s=s))
    N = len(steps)
    F = Sched(em)

    def corr_and_gelu(p):
        acc = ACC[p % 2]
        out = vH3 if p <= 3 else Hreg(0, p, 0)
        L = [RATE(RA + (0.9 if p == 0 else 0))]
        L += [f"ds_read_b64 v[{TG}:{TG+1}], v{aCSr}"]
        if p == 0:
            L += [f"ds_read_b128 v[{TX}:{TX+3}], v50", f"ds_read_b128 v[{TX+4}:{TX+7}], v50 offset:16"]
        L += [GAP(2)]
        L += hilo(TG, vAc)
        if p == 0:
            L += stats_finalize(TX, vBc, vK1, vK2, vpack=TX + 4)
        L += [WAIT_SLOT(36 * (p + 1))]
        L += [f"v_mfma_f32_32x32x8_bf16 v[{acc}:{acc+15}], v[{vAc}:{vAc+1}], v[{vBc}:{vBc+1}], v[{acc}:{acc+15}]"]
        if p < 5:
            L += [f"buffer_load_ushort v{vAc+1}, v{vOB1}, s[{SRD_C}:{SRD_C+3}], 0 offen offset:{128*(p+1)}"]
        if p == 0:
            L += [f"v_lshlrev_b32 v{TX+5}, 2, v0",
                  f"buffer_store_dword v{TX+4}, v{TX+5}, s[{SRD_E}:{SRD_E+3}], 0 offen sc1"]
        L += [GAP(1)]
        hx = p if p < 3 else (2 if p == 5 else None)
        mid = [(f"ds_write_b128 v{aHXw}, v[{out}:{out+3}] offset:{2048*hx}", "hx")] if hx is not None else None
        L += gelu(acc, out, mid, [DONE(("acc", p))])
        if hx is not None:
            L += [(f"ds_write_b128 v{aHXw}, v[{out+4}:{out+7}] offset:{2048*hx+1024}", "hx")]
        L += [DONE(("gelu", p))]
        return L

    def epilogue(dp, k):
        acc = accB[dp]
        stg = STG[k % 2]
        L = [RATE(cfg.get("rateE", 2)), GAP(2)]

        def st(h):
            def f():
                t = ts.get()
                em.op(f"s_mov_b32 s{t}, {4096*dp+1024*h}")
                em.op(f"buffer_store_dwordx4 v[{stg+4*h}:{stg+4*h+3}], v{vP}, s[{SRD_P}:{SRD_P+3}], s{t} offen {STMOD}", tag="st")
            return f
        cv = [f"v_cvt_pk_bf16_f32 v{stg+i}, v{acc+2*i}, v{acc+2*i+1}" for i in range(8)]
        L += cv[:4] + [st(0)] + cv[4:] + [DONE(("ep", dp)), GAP(cfg.get("stgap", 2)), st(1)]
        return L

    bars = list(range(0, 10)) + list(range(10, NSIG, 3))

    def barrier_event(sg):
        i = bars.index(sg)
        nx = bars[i + 1] if i + 1 < len(bars) else NSIG
        while DQ and DQ[0][1] < nx:
            assert DQ[0][0] <= lastbar[0]
            dma_issue(1)
        if sg == 64:
            F.flush_until(("gelu", 5))
        em.wait_lg_tag(["cs", "hx", "hr"])
        em.wait_tag([("sig", s) for s in range(sg, nx)])
        em.barrier()
        lastbar[0] = sg
        if cfg.get("stamps") and (sg % 3 == 1 or sg == 0):
            SP.stamp(f"bar{sg}")
        if sg % 9 == 1 and 10 <= sg <= 55:
            F.add(corr_and_gelu(sg // 9 - 1))
        if sg == 55:
            for p in (3, 4):
                for s in range(2):
                    r = Hreg(0, p, s)
                    pend_hx.append((f"ds_write_b128 v{aHXw}, v[{r}:{r+3}] offset:{2048*(p-3)+1024*s}", "hx"))
        if sg == 61:
            assert not pend_hx
            for p in (3, 4):
                for s in range(2):
                    r = Hreg(1, p, s)
                    pend_rd.append(f"ds_read_b128 v[{r}:{r+3}], v{aHXp} offset:{2048*(p-3)+1024*s}")
        if sg == 64:
            for s in range(2):
                r = Hreg(1, 5, s)
                pend_rd.append(f"ds_read_b128 v[{r}:{r+3}], v{aHXp} offset:{2048*2+1024*s}")

    def reads(m):
        st = steps[m]
        bf = BUF + 4 * (m % NBUF)
        if st["ph"] == "A":
            if st["p"] == 0:
                off = AQ.imm(triple(st["kb"]), 16384)
                em.op(f"ds_read_b128 v[{Q+4*m}:{Q+4*m+3}], v{aQ+st['b']} offset:{off}")
            off = AW.imm(pos_addr(st["sig"]))
            a = aW + st["b"]
            em.op(f"ds_read_b64_tr_b16 v[{bf}:{bf+1}], v{a} offset:{off}")
            em.op(f"ds_read_b64_tr_b16 v[{bf+2}:{bf+3}], v{a} offset:{off+512}")
        else:
            off = AB.imm(pos_addr(st["sig"])) + 2048 * st["s"]
            a = aBp if st["o"] else aBo
            em.op(f"ds_read_b64_tr_b16 v[{bf}:{bf+1}], v{a} offset:{off}")
            em.op(f"ds_read_b64_tr_b16 v[{bf+2}:{bf+3}], v{a} offset:{off+1024}")

    pend_hx, pend_rd = [], []
    nep = [0]
    barrier_event(0)
    for n in range(-D, N):
        m = n + D
        if n >= 0:
            st = steps[n]
            bf = BUF + 4 * (n % NBUF)
            if st["ph"] == "A":
                acc = ACC[st["p"] % 2]
                first = (st["kb"] == 0 and st["b"] == 0)
                if first and st["p"] >= 2:
                    F.flush_until(("acc", st["p"] - 2))
                q = Q + 16 * st["kb"] + 4 * st["b"]
                c = "0" if first else f"v[{acc}:{acc+15}]"
                em.op(f"v_mfma_f32_32x32x16_bf16 v[{acc}:{acc+15}], v[{bf}:{bf+3}], v[{q}:{q+3}], {c}")
                if st["b"] == 0:
                    c = "0" if st["kb"] == 0 else f"v[{vCSa}:{vCSa+3}]"
                    em.op(f"v_mfma_f32_16x16x32_bf16 v[{vCSa}:{vCSa+3}], v[{SEL}:{SEL+3}], v[{bf}:{bf+3}], {c}")
            else:
                acc = accB[st["dp"]]
                first = (st["half"] == 0 and st["a"] == 0 and st["o"] == 0 and st["s"] == 0)
                if n == 216:
                    F.flush_until(("acc", 4))
                if n == 216 + 36:
                    F.flush_until(("acc", 5))
                if first and st["dp"] >= 4:
                    F.flush_until(("ep", st["dp"] - 4))
                hr = Hreg(st["o"], 3 * st["half"] + st["a"], st["s"])
                c = "0" if first else f"v[{acc}:{acc+15}]"
                em.op(f"v_mfma_f32_32x32x16_bf16 v[{acc}:{acc+15}], v[{hr}:{hr+3}], v[{bf}:{bf+3}], {c}")
                if st["half"] == 1 and st["a"] == 2 and st["o"] == 1 and st["s"] == 1:
                    F.add(epilogue(st["dp"], nep[0]))
                    nep[0] += 1
            F.cur = n + 1
        if m < N:
            reads(m)
        if (m + 1) % 4 == 0 and (m + 1) // 4 in bars:
            barrier_event((m + 1) // 4)
            if n >= 36:
                continue
        if n < 0:
            continue
        nd = dma_issue(2 if n < 40 else 1)
        if st["ph"] == "A":
            if st["p"] == 0 and st["b"] < 2:
                for r in range(4):
                    em.op(f"v_dot2c_f32_bf16 v{vST}, s{sONES}, v{q+r}")
                    em.op(f"v_dot2c_f32_bf16 v{vST+1}, v{q+r}, v{q+r}")
            if n % 36 == 34:
                em.op(f"ds_write_b32 v{aCSw}, v{vCSa}", tag="cs")
                if n == 34:
                    em.op(f"ds_write_b64 v51, v[{vST}:{vST+1}]", tag="cs")
            if st["p"] == 5 and n - 180 == 16:
                for k in range(12):
                    p, o, s = k // 4, (k // 2) % 2, k % 2
                    r = Hreg(o, p, s)
                    pend_rd.append(f"ds_read_b128 v[{r}:{r+3}], v{aHXp if o else aHXw} offset:{2048*p+1024*s}")
        elif pend_hx and n % 4 == 2 and ("gelu", 4) in F.done:
            it = pend_hx.pop(0)
            em.op(it[0], tag=it[1])
        if pend_rd:
            em.op(pend_rd.pop(0), tag="hr")
        F.tick(cfg.get("dmascale", 0.7) if nd else 1.0)
    F.flush()
    SP.stamp("endc")
    em.waitcnt(vm=0)
    SP.stamp("end")
    SP.dump()
    em.op("s_endpgm")
```

```python
from common import *
from emit import Multi, WAIT_SLOT, GAP, DONE, UNTIL, BAR
from k1_mlp import x_dma, triple, stats_finalize, sel_setup, hilo, RING, NPOS, HX, vX0, vX1

IMG = HX
TAB = 139264
CS = 159744
EX = 160768
RT = 162816
ST = IMG

vL, aCSr, aW, vNeg, aCSw, aRT, aT0, aTs, aG, aIM, aH = 6, 7, 8, 12, 13, 14, 15, 16, 17, 18, 19
vCSa, SEL, BUF, NBUF = 20, 24, 28, 3
SETS = [44, 60, 76]
TA = 92
PRE = [104, 106]
Q = 108
PD = [40, 42, 252, 254]
K1, K2, KT = 0, 4, 2
HA, ACC2, HB0, HC = Q, Q + 32, Q + 128, 20
STG = [92, 100]
vP, aC4, vL4 = 7, 12, 13
sQ, sT4, sC4, sMASK = 82, 83, 86, 87
sHI = 90
SRD_C4, SRD_D = 92, 96
sS1, sDB = 100, 101


def tab(k, ent):
    return 4096 * (4 - k) + 256 * ent


def cfma(d, a, b):
    return [f"v_fmac_f32 v{d}, v{a}, v{b}", f"v_fmac_f32 v{d+1}, v{a}, v{b+1}",
            f"v_fma_f32 v{d}, -v{a+1}, v{b+1}, v{d}", f"v_fmac_f32 v{d+1}, v{a+1}, v{b}"]


def cmul(d, a, b):
    return [f"v_mul_f32 v{d}, v{a}, v{b}", f"v_mul_f32 v{d+1}, v{a}, v{b+1}",
            f"v_fma_f32 v{d}, -v{a+1}, v{b+1}, v{d}", f"v_fmac_f32 v{d+1}, v{a+1}, v{b}"]


def cmul_ip(re, im, c, t):
    return [f"v_mul_f32 v{t}, v{c+1}, v{re}", f"v_mul_f32 v{re}, v{c}, v{re}",
            f"v_fma_f32 v{re}, -v{c+1}, v{im}, v{re}", f"v_fma_f32 v{im}, v{c}, v{im}, v{t}"]


def frag_addr(em, regs, srow, tau):
    em.op("v_and_b32 v101, 31, v0")
    if tau:
        em.op("v_lshrrev_b32 v102, 1, v0")
        em.op("v_xor_b32 v102, v102, v0")
        em.op("v_bfe_u32 v102, v102, 2, 1")
        em.op("v_mul_u32_u24 v102, 12, v102")
        em.op("v_xor_b32 v101, v101, v102")
    em.op(f"s_lshl_b32 s40, s{srow}, 5")
    em.op("v_add_u32 v102, s40, v101")
    em.op("v_bfe_u32 v103, v101, 1, 3")
    em.op("v_lshrrev_b32 v100, 5, v0")
    em.op("v_xor_b32 v103, v103, v100")
    em.op(f"s_lshl_b32 s40, s{sPI}, 1")
    em.op("v_xor_b32 v103, s40, v103")
    em.op("v_lshlrev_b32 v103, 4, v103")
    em.op(f"v_lshl_add_u32 v{regs[0]}, v102, 7, v103")
    for i in (1, 2, 3):
        em.op(f"v_xor_b32 v{regs[i]}, {32*i}, v{regs[0]}")


def ssm_paths(em, cfg):
    D = 2
    STMOD = cfg.get("stmod", "sc1")
    N1, N2 = cfg.get("n1", 3), cfg.get("n2", 6)
    NA = 6
    ts = TempS()
    SP = Stamps(em, cfg.get("stamps", False))
    SP.stamp("start")
    BSZ = 576 * 1152
    em.op(f"s_sub_u32 s{sQ}, s{sJ}, 12")
    em.op(f"s_bitcmp1_b32 s{sW}, 1")
    em.op(f"s_cselect_b32 s44, s{ka(4)}, s{ka(3)}")
    em.op(f"s_cselect_b32 s45, s{ka(4)+1}, s{ka(3)+1}")
    em.op(f"s_cselect_b32 s46, s{ka(6)}, s{ka(5)}")
    em.op(f"s_cselect_b32 s47, s{ka(6)+1}, s{ka(5)+1}")
    em.op(f"s_lshl_b32 s40, s{sQ}, 4")
    em.op(f"s_lshl_b32 s41, s{sHF}, 1")
    em.op("s_add_u32 s40, s40, s41")
    em.op(f"s_and_b32 s42, s{sW}, 1")
    em.op("s_add_u32 s40, s40, s42")
    em.op(f"s_mul_i32 s40, s40, {8*1152}")
    em.op(f"s_sub_u32 s41, {BSZ}, s40")
    srd(em, SRD_A, 44, "s40", "s41")
    em.op("v_lshrrev_b32 v101, 3, v0")
    em.op("v_mul_u32_u24 v101, 0x480, v101")
    em.op("v_lshrrev_b32 v102, 4, v0")
    em.op("v_xor_b32 v102, v102, v0")
    em.op("s_lshl_b32 s42, s42, 2")
    em.op("v_xor_b32 v102, s42, v102")
    em.op("v_and_b32 v102, 7, v102")
    em.op(f"v_lshl_add_u32 v{vL}, v102, 4, v101")
    em.op(f"s_lshl_b32 s40, s{sQ}, 5")
    em.op("s_add_u32 s40, s40, 1024")
    em.op(f"s_sub_u32 s41, {BSZ}, s40")
    srd(em, SRD_C4, 46, "s40", "s41")

    slots = [("S1", k, kb) for k in range(5) for kb in range(9)]
    for P in range(2):
        for dp in range(NA):
            slots += [("AB", dp, P, 0), ("AB", dp, P, 1)]
    slots += [("C4", i) for i in range(NA // 2)]
    for dp in range(NA, 9):
        slots += [("AB", dp, P, c) for P in range(2) for c in range(2)]
        if dp % 2 == 1 or dp == 8:
            slots.append(("C4", dp // 2))
    NSIG = len(slots)

    def pos_addr(sig):
        return triple(sig) + 16384 if sig < 9 else RING + 8192 * ((sig - 9) % NPOS)

    def w_dma(sig):
        sl = slots[sig]

        def f():
            t = ts.get()
            em.op(f"s_add_u32 m0, s{sW1K}, {pos_addr(sig)}")
            v = vL
            if sl[0] == "S1":
                sr = SRD_A
                if sl[1] < 4:
                    em.op(f"s_mov_b32 s{t}, {sl[1]*32*1152 + 128*sl[2]}")
                else:
                    em.op(f"s_add_u32 s{t}, s{sT4}, {128*sl[2]}")
            elif sl[0] == "AB":
                sr = (SRD_B, SRD_C)[sl[3]]
                em.op(f"s_mov_b32 s{t}, {sl[1]*64*1152 + 128*sl[2]}")
            else:
                F.need("s2addr")
                sr, v = SRD_C4, vL4
                if sl[1] < 4:
                    em.op(f"s_add_u32 s{t}, s{sC4}, {sl[1]*128*1152}")
                else:
                    em.op(f"s_mov_b32 s{t}, {8*64*1152}")
            em.op(f"buffer_load_dwordx4 v{v}, s[{sr}:{sr+3}], s{t} offen lds", tag=("sig", sig))
        return f

    DQ = []
    for kb in range(9):
        e = -1 if kb < 6 else kb - 4
        DQ += [(e, kb, x_dma(em, kb, triple(kb), 0)), (e, kb, x_dma(em, kb, triple(kb), 1)), (e, kb, w_dma(kb))]
    for sig in range(9, NSIG):
        e = -1 if sig == 9 else (5 + (sig - 10) // 3 if sig < 19 else max(10, sig - 11))
        DQ.append((e, sig, w_dma(sig)))
    lastbar = [-1]

    def dma_issue(k):
        c = 0
        while DQ and c < k and DQ[0][0] <= lastbar[0]:
            DQ.pop(0)[2]()
            c += 1
        return c

    dma_issue(3 * N1)
    RAW = SETS[2]
    vN, vU0 = SETS[2] + 15, SETS[1]
    em.op("v_and_b32 v101, 31, v0")
    em.op(f"s_lshl_b32 s40, s{sQ}, 8")
    em.op("v_lshl_add_u32 v102, v101, 1, s40")
    em.op("v_and_b32 v103, 15, v0")
    em.op(f"s_lshl_b32 s40, s{sQ}, 5")
    em.op("v_lshl_add_u32 v103, v103, 1, s40")
    for i, p in enumerate((1, 2, 7)):
        srd(em, SRD_D, ka(p), None, 1152)
        for k in range(5):
            a, o = (102, 64 * k) if k < 4 else (103, 1024)
            em.op(f"buffer_load_ushort v{RAW+2*k+i if i < 2 else RAW+10+k}, v{a}, s[{SRD_D}:{SRD_D+3}], 0 offen offset:{o}")
    em.op("v_and_b32 v101, 15, v0")
    em.op(f"s_lshl_b32 s40, s{sHF}, 7")
    em.op(f"s_add_u32 s40, s40, {TAB}")
    em.op(f"v_lshl_add_u32 v{aT0}, v101, 3, s40")
    em.op("v_bfe_u32 v102, v0, 4, 1")
    em.op("v_lshrrev_b32 v103, 5, v0")
    em.op("v_lshl_add_u32 v102, v102, 1, v103")
    em.op(f"v_lshl_add_u32 v{aTs}, v102, 8, v{aT0}")
    em.op(f"s_lshl_b32 s40, s{sRG}, 8")
    em.op(f"v_add_u32 v{aG}, s40, v{aT0}")
    em.op(f"s_lshl_b32 s40, s{sW}, 7")
    em.op(f"s_add_u32 s40, s40, {RT}")
    em.op(f"v_lshl_add_u32 v{aRT}, v102, 5, s40")
    em.op(f"s_lshl_b32 s40, s{sRG}, 12")
    em.op(f"s_add_u32 s40, s40, {IMG}")
    em.op(f"s_lshl_b32 s41, s{sHF}, 11")
    em.op("s_add_u32 s41, s41, s40")
    em.op("v_lshl_add_u32 v101, v101, 6, s41")
    em.op(f"v_lshl_add_u32 v{aIM}, v102, 4, v101")
    em.op("v_lshl_add_u32 v101, v103, 9, s40")
    em.op("v_bfe_u32 v102, v0, 2, 2")
    em.op("v_lshl_add_u32 v101, v102, 6, v101")
    em.op("v_bfe_u32 v102, v0, 4, 1")
    em.op("v_lshl_add_u32 v101, v102, 5, v101")
    em.op("v_and_b32 v102, 3, v0")
    em.op(f"v_lshl_add_u32 v{aH}, v102, 3, v101")
    em.op(f"s_mul_i32 s40, s{sQ}, {5*4096}")
    em.op(f"s_lshl_b32 s41, s{sRB}, 8")
    em.op("s_sub_u32 s40, s40, s41")
    em.op(f"s_add_u32 s40, s40, {WS_E + 15*256 - TAB + 4*4096}")
    em.op(f"s_cmp_eq_u32 s{sRG}, 3")
    em.op(f"s_cselect_b32 s42, {TAB+256}, 0")
    em.op("s_cselect_b32 s43, 0, 0x1000")
    srd(em, SRD_E, ka(16), "s40", "s42")
    em.op("v_mov_b32 v102, -1")
    em.op("v_mov_b32 v103, -1")
    for k in range(5):
        em.op(f"buffer_store_dwordx2 v[102:103], v{aTs}, s[{SRD_E}:{SRD_E+3}], 0 offen sc1", tag="clean")
        if k < 4:
            em.op(f"s_sub_u32 s{SRD_E}, s{SRD_E}, 4096")
            em.op(f"s_subb_u32 s{SRD_E+1}, s{SRD_E+1}, 0")
    em.op(f"s_sub_u32 s40, s40, {4*4096 - 256}")
    em.op(f"s_add_u32 s41, s41, {TAB}")
    srd(em, SRD_F, ka(16), "s40", "s41")
    srd(em, SRD_D, ka(15), None, 256)
    em.op(f"s_lshl_b32 s40, s{sQ}, 1")
    em.op(f"s_add_u32 s40, s40, s{sHF}")
    em.op(f"s_lshl_b32 s{sDB}, s40, 5")
    vFo, vFb = SETS[1] + 2, SETS[1] + 3
    em.op(f"s_add_u32 s43, s43, s{sDB}")
    em.op(f"v_mov_b32 v{vFo}, s43")
    em.op(f"s_lshl_b32 s40, 1, s{sRB}")
    em.op(f"v_mov_b32 v{vFb}, s40")
    em.op(f"s_sub_u32 s{sMASK}, s40, 1")
    dma_issue(3 * (N2 - N1))
    em.op(f"s_mul_i32 s40, s{sW}, {8*1152}")
    em.op(f"s_lshl_b32 s41, s{sQ}, 8")
    em.op("s_add_u32 s40, s40, s41")
    em.op(f"s_sub_u32 s41, {BSZ}, s40")
    srd(em, SRD_B, ka(5), "s40", "s41")
    srd(em, SRD_C, ka(6), "s40", "s41")
    em.op(f"s_lshl_b32 s40, s{sRB}, 4")
    em.op(f"s_add_u32 s40, s40, s{sJ}")
    em.op("s_lshl_b32 s40, s40, 2")
    em.op(f"s_add_u32 s40, s40, s{sRG}")
    em.op("s_mul_i32 s40, s40, 36864")
    srd(em, SRD_P, ka(16), "s40", 36864)
    em.op(f"s_mul_i32 s40, s{sQ}, 7")
    em.op(f"s_add_u32 s40, s40, s{sHF}")
    em.op("s_sub_u32 s40, 32, s40")
    em.op(f"s_mul_i32 s{sT4}, s40, {16*1152}")
    em.op(f"s_mul_i32 s{sC4}, s{sHF}, {64*1152}")
    em.op(f"s_mov_b32 s{sHI}, 0")
    em.op("s_mov_b32 s89, 0")
    em.op(f"s_mov_b32 s{sHI+1}, -1")
    aQ = SETS[1] + 4
    frag_addr(em, [aW + i for i in range(4)], sHF, False)
    frag_addr(em, [aQ + i for i in range(4)], sRG, True)
    aRw, aSr, aSw, vST, aTw = 1, 2, SETS[1] + 10, SETS[1] + 12, PRE[1]
    em.op(f"s_lshl_b32 s40, s{sW}, 7")
    em.op(f"s_add_u32 s40, s40, {RT}")
    em.op(f"v_lshl_add_u32 v{aRw}, v101, 2, s40")
    em.op("v_and_b32 v101, 31, v0")
    em.op(f"s_lshl_b32 s40, s{sHF}, 9")
    em.op(f"s_add_u32 s40, s40, {CS}")
    em.op("v_lshl_add_u32 v103, v101, 4, s40")
    em.op(f"v_lshl_add_u32 v{aCSr}, v100, 3, v103")
    em.op(f"s_lshl_b32 s41, s{sRG}, 2")
    em.op(f"v_add_u32 v{aCSw}, s41, v103")
    em.op(f"s_lshl_b32 s40, s{sRG}, 10")
    em.op(f"s_add_u32 s40, s40, {ST}")
    em.op(f"v_lshl_add_u32 v{aSr}, v101, 5, s40")
    em.op(f"s_lshl_b32 s41, s{sHF}, 4")
    em.op(f"v_lshl_add_u32 v{aSw}, v100, 3, v{aSr}")
    em.op(f"v_add_u32 v{aSw}, s41, v{aSw}")
    sel_setup(em, SEL)
    em.op(f"v_mov_b32 v{vST}, 0")
    em.op(f"v_mov_b32 v{vST+1}, 0")
    em.op(f"ds_write_b64 v{aG}, v[{vST}:{vST+1}] offset:{EX-TAB}", tag="ex")
    em.op(f"s_lshl_b32 s40, s{sW}, 9")
    em.op(f"s_add_u32 s40, s40, {TAB}")
    em.op(f"v_lshl_add_u32 v{aTw}, v0, 3, s40")
    em.op(f"s_lshr_b32 s40, s{sW}, 1")
    em.op("s_lshl_b32 s41, s40, 3")
    em.op("s_lshr_b32 s41, 0x20800800, s41")
    em.op("s_and_b32 s41, s41, 0xff")
    em.op(f"s_and_b32 s42, s{sW}, 1")
    em.op("s_mul_i32 s42, s42, s41")
    em.op("s_lshl_b32 s42, s42, 1")
    em.op("s_cmp_eq_u32 s40, 0")
    em.op("s_cselect_b32 s41, 511, s41")
    em.op("s_cselect_b32 s42, 1, s42")
    em.op(f"v_mul_u32_u24 v{vN}, s41, v100")
    em.op(f"v_add_u32 v{vN}, s42, v{vN}")
    em.op(f"v_cvt_f32_u32 v{vN}, v{vN}")
    em.op("s_cmp_eq_u32 s40, 2")
    em.op(f"s_cselect_b32 s{sS1}, 1.0, 0")
    em.op("s_cselect_b32 s41, 0, 1.0")
    em.op(f"s_cmp_eq_u32 s{sW}, 1")
    em.op("s_cselect_b32 s41, 0, s41")
    vU0 = PRE[1] + 1
    em.op(f"v_mov_b32 v{vU0}, s41")

    AQ = AddrSet(em, [aQ + i for i in range(4)])
    AW = AddrSet(em, [aW + i for i in range(4)])
    AC4 = AddrSet(em, [aC4])
    F = Multi(em, 2, cfg.get("rateS", 6.0))
    Q1, Q2 = F.qs

    def table_job(k):
        lr, li, ld = RAW + 2 * k, RAW + 2 * k + 1, RAW + 10 + k
        a, b, x, y = PD[0], PD[0] + 1, PD[1], PD[1] + 1
        u, w, cr, ci = PD[2], PD[2] + 1, PD[3], PD[3] + 1
        L = [f"v_lshlrev_b32 v{ld}, 16, v{ld}", f"v_lshlrev_b32 v{lr}, 16, v{lr}", f"v_lshlrev_b32 v{li}, 16, v{li}",
             f"v_mul_f32 v{ld}, {f32(LOG2E)}, v{ld}", f"v_exp_f32 v{ld}, v{ld}",
             f"v_mul_f32 v{u}, v{lr}, v{lr}", f"v_fmac_f32 v{u}, v{li}, v{li}",
             f"v_cvt_pk_bf16_f32 v{ld}, v{ld}, v{ld}", f"v_rcp_f32 v{u}, v{u}", f"v_lshlrev_b32 v{ld}, 16, v{ld}",
             f"v_mul_f32 v{a}, v{ld}, v{lr}", f"v_mul_f32 v{b}, v{ld}, v{li}",
             f"v_mul_f32 v{a}, {f32(LOG2E)}, v{a}", f"v_mul_f32 v{b}, {f32(INV2PI)}, v{b}",
             f"v_exp_f32 v{w}, v{a}", f"v_fract_f32 v{ld}, v{b}", f"v_cos_f32 v{x}, v{ld}", f"v_sin_f32 v{y}, v{ld}",
             f"v_mul_f32 v{u}, s{sS1}, v{u}", f"v_add_f32 v{u}, v{u}, v{u}",
             f"v_fma_f32 v{x}, v{x}, v{w}, -1.0", f"v_mul_f32 v{y}, v{y}, v{w}",
             f"v_mul_f32 v{a}, v{vN}, v{a}", f"v_mul_f32 v{b}, v{vN}, v{b}",
             f"v_mul_f32 v{cr}, v{x}, v{lr}", f"v_mul_f32 v{ci}, v{y}, v{lr}",
             f"v_exp_f32 v{a}, v{a}", f"v_fract_f32 v{b}, v{b}",
             f"v_fmac_f32 v{cr}, v{y}, v{li}", f"v_fma_f32 v{ci}, -v{x}, v{li}, v{ci}",
             f"v_cos_f32 v{x}, v{b}", f"v_sin_f32 v{y}, v{b}",
             f"v_fma_f32 v{cr}, v{cr}, v{u}, v{vU0}", f"v_mul_f32 v{ci}, v{ci}, v{u}",
             f"v_mul_f32 v{x}, v{x}, v{a}", f"v_mul_f32 v{y}, v{y}, v{a}"]
        L += cmul(lr, cr, x)
        return L

    def table_write(k):
        lr = RAW + 2 * k
        return [(f"ds_write_b64 v{aTw}, v[{lr}:{lr+1}] offset:{tab(k, 0)}", "ex"), DONE(("tabw", k))]

    spins = []

    def spin_check(name, loads, check):
        def f():
            em.nop(2)
            em.raw(f"  s_cbranch_vccnz SPIN_{name}")
            em.label(f"BACK_{name}")
            em.pos += 1
        spins.append((name, loads, check))
        return list(check) + [f]

    tabbar = {}

    def bump(sr):
        def f():
            em.op(f"s_add_u32 s{sr}, s{sr}, 4096")
            em.op(f"s_addc_u32 s{sr+1}, s{sr+1}, 0")
        return f

    def early(k):
        acc = SETS[k % 3]
        pre = PRE[k % 2]
        RE = [acc + j for j in range(8)]
        IM = [acc + 8 + j for j in range(8)]
        t = TA
        L = [f"ds_read_b64 v[{t+8}:{t+9}], v{aCSr}"]
        if k == 0:
            L += [f"ds_read_b128 v[{t}:{t+3}], v{aSr}", f"ds_read_b128 v[{t+4}:{t+7}], v{aSr} offset:16", GAP(1)]
            sd = PRE[0]
            L += stats_finalize(t, sd, vr=t + 4)
            L += [f"v_mov_b32 v{vNeg}, v{sd}", f"ds_write_b32 v{aRw}, v{t+4}"]
        L += [f"ds_read_b128 v[{t}:{t+3}], v{aRT}", f"ds_read_b128 v[{t+4}:{t+7}], v{aRT} offset:16"]
        if k > 0:
            L += [GAP(1)]
        L += hilo(t + 8, t + 8) + [f"v_mov_b32 v{t+9}, 0"]
        L += [WAIT_SLOT(36 * (k + 1))]
        L += [f"v_mfma_f32_32x32x8_bf16 v[{acc}:{acc+15}], v[{vNeg}:{vNeg+1}], v[{t+8}:{t+9}], v[{acc}:{acc+15}]",
              DONE(("corr", k)), UNTIL(lambda: k in tabbar),
              f"ds_read_b64 v[{t+10}:{t+11}], v{aT0} offset:{tab(k, 0)}", GAP(1)]
        for j in range(8):
            L += [f"v_permlane16_swap_b32 v{acc+j}, v{acc+8+j}"]
        for j in range(8):
            L += [f"v_mul_f32 v{RE[j]}, v{t+j}, v{RE[j]}", f"v_mul_f32 v{IM[j]}, v{t+j}, v{IM[j]}"]
        lam = t + 10
        l8, l16, k2 = t + 4, t + 6, t + 8
        L += [f"ds_read_b64 v[{l8}:{l8+1}], v{aT0} offset:{tab(k, 5)}",
              f"ds_read_b64 v[{l16}:{l16+1}], v{aT0} offset:{tab(k, 6)}",
              f"ds_read_b64 v[{k2}:{k2+1}], v{aTs} offset:{tab(k, 2)}"]
        er, ei = RE[0], IM[0]
        for j in range(1, 8):
            n = t + 2 * (j % 2)
            L += [f"v_fma_f32 v{n}, v{lam}, v{er}, v{RE[j]}", f"v_fma_f32 v{n+1}, v{lam}, v{ei}, v{IM[j]}",
                  f"v_fma_f32 v{n}, -v{lam+1}, v{ei}, v{n}", f"v_fmac_f32 v{n+1}, v{lam+1}, v{er}"]
            er, ei = n, n + 1
        x, y = t + 2, t
        L += [f"v_mov_b32 v{y}, v{x}", f"v_mov_b32 v{y+1}, v{x+1}",
              f"v_permlane32_swap_b32 v{x}, v{y}", f"v_permlane32_swap_b32 v{x+1}, v{y+1}"]
        L += cfma(y, l8, x)
        L += [UNTIL(lambda: k < 2 or ("h", k - 2) in F.done)]
        if k == 1:
            L += [UNTIL(lambda: ("tabw", 4) in F.done)]
        L += [f"v_cndmask_b32 v{pre}, 0, v{x}, s[{sHI}:{sHI+1}]", f"v_cndmask_b32 v{pre+1}, 0, v{x+1}, s[{sHI}:{sHI+1}]"]
        L += [f"v_mov_b32 v{x}, v{y}", f"v_mov_b32 v{x+1}, v{y+1}",
              f"v_permlane16_swap_b32 v{y}, v{x}", f"v_permlane16_swap_b32 v{y+1}, v{x+1}"]
        L += cfma(x, l16, y)

        def exw():
            em.op("s_mov_b64 exec, 0xffff")
            em.op(f"ds_write_b64 v{aG}, v[{x}:{x+1}] offset:{EX-TAB+768}", tag="ex")
            em.op("s_mov_b64 exec, -1")
        L += [exw]
        L += cfma(pre, k2, y)
        l32, zs = t + 10, t
        L += [f"ds_read_b64 v[{l32}:{l32+1}], v{aT0} offset:{tab(k, 13)}",
              f"ds_read_b64 v[{zs}:{zs+1}], v{aTs} offset:{tab(k, 4)}", DONE(("e1", k)), BAR()]
        e3, e2, e1 = t + 4, t + 6, t + 8
        L += [(f"ds_read_b64 v[{e3}:{e3+1}], v{aG} offset:{EX-TAB}", "hr"),
              (f"ds_read_b64 v[{e2}:{e2+1}], v{aG} offset:{EX-TAB+256}", "hr"),
              (f"ds_read_b64 v[{e1}:{e1+1}], v{aG} offset:{EX-TAB+512}", "hr"), GAP(1)]
        L += cfma(e2, l32, e3) + cfma(e1, l32, e2) + cfma(x, l32, e1)
        L += [f"v_min_u32 v{x}, -2, v{x}",
              (f"buffer_store_dwordx2 v[{x}:{x+1}], v{aTs}, s[{SRD_E}:{SRD_E+3}], 0 offen sc1", "pub"),
              bump(SRD_E), DONE(("pub", k))]
        L += cfma(pre, zs, e1)
        L += [DONE(("e2", k))]
        return L

    POLL = cfg.get("poll", [44, 44, 44, 46, 56])
    PLAT = cfg.get("plat", 9)
    imgfree = {0: True, 1: True}

    def late(k):
        acc = SETS[k % 3]
        pre = PRE[k % 2]
        RE = [acc + j for j in range(8)]
        IM = [acc + 8 + j for j in range(8)]
        L = [UNTIL(lambda: ("e1", k) in F.done), f"ds_read_b64 v[{K1}:{K1+1}], v{aT0} offset:{tab(k, 8)}",
             f"ds_read_b64 v[{PD[0]}:{PD[0]+1}], v{aTs} offset:{tab(k, 8)}",
             f"ds_read_b64 v[{PD[1]}:{PD[1]+1}], v{aG} offset:{tab(k, 12)}", GAP(1)]
        L += cmul(K2, PD[0], PD[1])
        cm = []
        for j in range(8):
            cm += cmul_ip(RE[j], IM[j], K1, KT)
        cm += [UNTIL(lambda: ("e2", k) in F.done)]
        cm += cmul_ip(pre, pre + 1, K1, KT)
        cm += [f"ds_read_b64 v[{K1}:{K1+1}], v{aT0} offset:{tab(k, 1)}"]
        if k == 0:
            ld = [f"buffer_load_dword v{PD[0]}, off, s[{SRD_D}:{SRD_D+3}], s{sDB} sc1"]
            L += ld + cm + [WAIT_SLOT(36 + POLL[0] - 2)]
            cm = []
            L += spin_check("c", ld, [f"v_and_b32 v{PD[0]}, s{sMASK}, v{PD[0]}", f"v_cmp_ne_u32 vcc, s{sMASK}, v{PD[0]}"])
        L += [WAIT_SLOT(36 * (k + 1) + POLL[k])]
        ld = [f"buffer_load_dwordx2 v[{PD[i]}:{PD[i]+1}], v{aTs}, s[{SRD_F}:{SRD_F+3}], 0 offen offset:{1024*i} sc1"
              for i in (3, 2, 1, 0)]
        L += [lambda: [em.op(x) for x in ld]] + [DONE(("poll", k))] + cm + [WAIT_SLOT(36 * (k + 1) + POLL[k] + PLAT), DONE(("chk", k))]
        L += spin_check(f"p{k}", ld, [f"v_max3_u32 v{KT}, v{PD[0]}, v{PD[1]}, v{PD[2]}", f"v_max_u32 v{KT}, v{KT}, v{PD[3]}",
                                      f"v_cmp_eq_u32 vcc, -1, v{KT}"])
        L += [bump(SRD_F)]
        L += cfma(PD[2], K1, PD[3])
        zs = PD[3]
        L += [f"ds_read_b64 v[{zs}:{zs+1}], v{aTs} offset:{tab(k, 4)}"]
        L += cfma(PD[1], K1, PD[2]) + cfma(PD[0], K1, PD[1])
        L += [f"ds_read_b64 v[{K1}:{K1+1}], v{aT0} offset:{tab(k, 0)}"]
        s = PD[1]
        L += cmul(s, K2, PD[0])
        L += [f"v_permlane32_swap_b32 v{s}, v{s+1}", f"v_add_f32 v{s}, v{s}, v{s+1}", f"v_mov_b32 v{s+1}, v{s}",
              f"v_permlane16_swap_b32 v{s}, v{s+1}", f"v_add_f32 v{s}, v{s}, v{s+1}", f"v_mov_b32 v{s+1}, v{s}",
              f"v_permlane32_swap_b32 v{s}, v{s+1}"]
        L += [f"v_xor_b32 v{KT}, 0x80000000, v{K1+1}"]
        L += cfma(pre, zs, s)
        hr, hi = pre, pre + 1
        for j in range(8):
            L += [f"v_fmac_f32 v{RE[j]}, v{K1}, v{hr}", f"v_fmac_f32 v{IM[j]}, v{K1}, v{hi}",
                  f"v_fmac_f32 v{RE[j]}, v{KT}, v{hi}", f"v_fmac_f32 v{IM[j]}, v{K1+1}, v{hr}"]
            hr, hi = RE[j], IM[j]
            if j % 2 == 1:
                L += [f"v_cvt_pk_bf16_f32 v{PD[0]+j//2}, v{RE[j-1]}, v{RE[j]}",
                      f"v_cvt_pk_bf16_f32 v{PD[2]+j//2}, -v{IM[j-1]}, -v{IM[j]}"]
        L += [DONE(("h", k)), UNTIL(lambda: imgfree[k % 2])]

        def mark():
            imgfree[k % 2] = False
        L += [(f"ds_write_b128 v{aIM}, v[{PD[0]}:{PD[0]+3}] offset:{16384*(k%2)}", "hx"),
              (f"ds_write_b128 v{aIM}, v[{PD[2]}:{PD[2]+3}] offset:{16384*(k%2)+1024}", "hx"),
              UNTIL(lambda: mark() or True), DONE(("hw", k))]
        return L

    for k in range(5):
        Q2.add(table_job(k))
        if k == 0:
            Q2.add(table_write(0))
    Q2.add([UNTIL(lambda: lastbar[0] >= 9)])
    for k in range(1, 5):
        Q2.add(table_write(k))
    for k in range(5):
        Q2.add(late(k))

    def s2addr():
        return [f"v_mbcnt_lo_u32_b32 v{TA}, -1, 0", f"v_mbcnt_hi_u32_b32 v{TA}, -1, v{TA}",
                f"s_lshl_b32 s{sT4}, s{sHF}, 11", f"v_lshl_add_u32 v{vP}, v{TA}, 4, s{sT4}",
                f"v_and_b32 v{TA+1}, 31, v{TA}", f"s_lshl_b32 s{sT4}, s{sHF}, 10",
                f"v_lshl_add_u32 v{TA+1}, v{TA+1}, 5, s{sT4}", f"v_lshrrev_b32 v{TA+2}, 5, v{TA}",
                f"v_lshl_add_u32 v{aC4}, v{TA+2}, 4, v{TA+1}",
                f"s_and_b32 s{sT4}, s{sW}, 1", f"s_lshl_b32 s{sT4}, s{sT4}, 5",
                f"v_lshrrev_b32 v{TA+1}, 1, v{TA}", f"v_add_u32 v{TA+1}, s{sT4}, v{TA+1}",
                f"v_mul_u32_u24 v{TA+1}, 0x480, v{TA+1}", f"v_and_b32 v{TA+2}, 1, v{TA}",
                f"v_lshl_add_u32 v{vL4}, v{TA+2}, 4, v{TA+1}", DONE("s2addr")]

    def Hreg(P, c, kap):
        if P == 0:
            return HA + 16 * c + 4 * kap
        if P == 1:
            return (HB0 if kap < 2 else SETS[2]) + 8 * c + 4 * (kap % 2)
        return HC + 4 * c
    acc2 = {dp: ACC2 + 16 * dp for dp in range(6)}
    acc2[6], acc2[7], acc2[8] = SETS[0], SETS[1], ACC2

    steps = []
    for sig, sl in enumerate(slots):
        if sl[0] == "S1":
            steps += [dict(ph="A", sig=sig, k=sl[1], kb=sl[2], b=b) for b in range(4)]
        elif sl[0] == "AB":
            steps += [dict(ph="B", sig=sig, dp=sl[1], P=sl[2], c=sl[3], b=b) for b in range(4)]
        else:
            steps += [dict(ph="B", sig=sig, dp=2 * sl[1] + i // 2, P=2, c=i % 2, b=i) for i in range(4 if sl[1] < 4 else 2)]
    N = len(steps)

    def epilogue(dp, i):
        acc = acc2[dp]
        stg = STG[i % 2]

        def st(h):
            def f():
                t = ts.get()
                em.op(f"s_mov_b32 s{t}, {4096*dp+1024*h}")
                em.op(f"buffer_store_dwordx4 v[{stg+4*h}:{stg+4*h+3}], v{vP}, s[{SRD_P}:{SRD_P+3}], s{t} offen {STMOD}", tag="st")
            return f
        cv = [f"v_cvt_pk_bf16_f32 v{stg+j}, v{acc+2*j}, v{acc+2*j+1}" for j in range(8)]
        g = cfg.get("stgapS", 1)
        return [GAP(0 if len(Q1.q) > 4 else 2)] + cv[:4] + [st(0), GAP(g)] + cv[4:] + [DONE(("ep", dp)), st(1), GAP(g)]

    pat = cfg.get("barpat", [0, 3, 5, 7])
    bars = list(range(0, 10)) + [s for s in range(10, 55) if s % 9 in pat] + list(range(57, NSIG, 3))
    if 10 not in bars:
        bars = sorted(bars + [10])
    hread = {}
    pend_rd = []

    def h_reads(P, kaps):
        for kap in kaps:
            for c in range(2):
                r = Hreg(P, c, kap)
                off = 16384 * (kap >> 1) + 2048 * (kap & 1) + 1024 * c
                k = 2 * P + (kap >> 1)
                pend_rd.append((k, f"ds_read_b64_tr_b16 v[{r}:{r+1}], v{aH} offset:{off}"))
                pend_rd.append((k, f"ds_read_b64_tr_b16 v[{r+2}:{r+3}], v{aH} offset:{off+256}"))

    def barrier_event(sg):
        i = bars.index(sg)
        nx = bars[i + 1] if i + 1 < len(bars) else NSIG
        while DQ and DQ[0][1] < nx:
            assert DQ[0][0] <= lastbar[0]
            dma_issue(1)
        if sg == 9:
            F.need(("tabw", 0))
        F.barrier()
        em.wait_lg_tag(["cs", "hx", "hr", "ex"])
        em.wait_tag([("sig", s) for s in range(sg, nx)])
        em.barrier()
        lastbar[0] = sg
        if cfg.get("stamps") and (sg % 9 in (0, 5) or sg > 56):
            SP.stamp(f"bar{sg}")
        for k in range(5):
            if ("tabw", k) in F.done and k not in tabbar:
                tabbar[k] = sg
            if hread.get(k) == "issued" and not any(x[0] == k for x in pend_rd):
                hread[k] = "done"
                imgfree[k % 2] = True
            if ("hw", k) in F.done and k not in hread:
                hread[k] = "ready"
        if sg % 9 == 0 and 9 <= sg <= 45:
            Q1.add(early(sg // 9 - 1))
            if sg == 45:
                Q1.add(s2addr())
        if sg == N1:
            em.wait_tag("clean")
            em.op("s_mov_b64 exec, 1")
            em.op(f"buffer_atomic_or v{vFb}, v{vFo}, s[{SRD_D}:{SRD_D+3}], 0 offen sc1")
            em.op("s_mov_b64 exec, -1")

    def reads(m):
        st = steps[m]
        bf = BUF + 4 * (m % NBUF)
        if m == 180:
            em.op(f"s_lshl_b32 s40, s{sPI}, 5")
            for b in range(4):
                em.op(f"v_xor_b32 v{aW+b}, s40, v{aW+b}")
        if st["ph"] == "A" and st["k"] == 0:
            off = AQ.imm(triple(st["kb"]), 16384)
            em.op(f"ds_read_b128 v[{Q+4*m}:{Q+4*m+3}], v{aQ+st['b']} offset:{off}")
        if st["ph"] == "B" and st["P"] == 2:
            off = AC4.imm(pos_addr(st["sig"])) + 2048 * st["b"]
            em.op(f"ds_read_b128 v[{bf}:{bf+3}], v{aC4} offset:{off}")
        else:
            off = AW.imm(pos_addr(st["sig"]))
            em.op(f"ds_read_b128 v[{bf}:{bf+3}], v{aW+st['b']} offset:{off}")

    nep = [0]
    seen = set()
    barrier_event(0)
    for n in range(-D, N):
        m = n + D
        if n >= 0:
            st = steps[n]
            bf = BUF + 4 * (n % NBUF)
            if st["ph"] == "A":
                k = st["k"]
                acc = SETS[k % 3]
                first = (st["kb"] == 0 and st["b"] == 0)
                if first and k >= 3:
                    F.need(("h", k - 3))
                if first and k == 2:
                    F.need(("tabw", 4))
                q = Q + 16 * st["kb"] + 4 * st["b"]
                c = "0" if first else f"v[{acc}:{acc+15}]"
                em.op(f"v_mfma_f32_32x32x16_bf16 v[{acc}:{acc+15}], v[{q}:{q+3}], v[{bf}:{bf+3}], {c}")
                if st["b"] == 0:
                    c = "0" if st["kb"] == 0 else f"v[{vCSa}:{vCSa+3}]"
                    em.op(f"v_mfma_f32_16x16x32_bf16 v[{vCSa}:{vCSa+3}], v[{SEL}:{SEL+3}], v[{bf}:{bf+3}], {c}")
            else:
                dp, P = st["dp"], st["P"]
                acc = acc2[dp]
                first = dp not in seen
                seen.add(dp)
                for k in ((0, 1), (2, 3), (4,))[P]:
                    assert hread.get(k) in ("issued", "done"), (n, k, hread, F.qs[0].log)
                while any(x[0] // 2 == P for x in pend_rd):
                    print("   forced H read at", n)
                    em.op(pend_rd.pop(0)[1], tag="hr")
                if first and dp == 8:
                    F.need(("ep", 0))
                hr = Hreg(P, st["c"], st["b"])
                c = "0" if first else f"v[{acc}:{acc+15}]"
                em.op(f"v_mfma_f32_32x32x16_bf16 v[{acc}:{acc+15}], v[{hr}:{hr+3}], v[{bf}:{bf+3}], {c}")
            F.set_cur(n + 1)
            if st["ph"] == "B" and P == 2 and st["c"] == 1:
                Q1.add(epilogue(dp, nep[0]))
                nep[0] += 1
        if m < N:
            reads(m)
        if n >= 0 and st["ph"] == "A":
            if st["k"] == 0 and st["b"] < 2:
                for r in range(4):
                    em.op(f"v_dot2c_f32_bf16 v{vST}, s{sONES}, v{q+r}")
                    em.op(f"v_dot2c_f32_bf16 v{vST+1}, v{q+r}, v{q+r}")
            if n % 36 == 33:
                em.op(f"ds_write_b32 v{aCSw}, v{vCSa}", tag="cs")
                if n == 33:
                    em.op(f"ds_write_b64 v{aSw}, v[{vST}:{vST+1}]", tag="cs")
        if (m + 1) % 4 == 0 and (m + 1) // 4 in bars:
            barrier_event((m + 1) // 4)
            if n >= 33:
                F.tick(0.4)
                continue
        if n < 0:
            continue
        nd = dma_issue(2 if n < 40 else 1)
        if not pend_rd:
            for k in range(5):
                if hread.get(k) == "ready":
                    ok = {0: n >= 152, 1: n >= 152, 2: n >= 180, 3: n >= 180 and ("h", 2) in F.done, 4: n >= 180}[k]
                    if ok:
                        h_reads(k // 2, [0] if k == 4 else [2 * (k % 2), 2 * (k % 2) + 1])
                        hread[k] = "issued"
                        F.qs[0].log.append((("hread", k), n))
                    break
        if pend_rd:
            em.op(pend_rd.pop(0)[1], tag="hr")
        F.tick(cfg.get("dmascale", 0.7) if nd else 1.0)
    F.flush()
    SP.stamp("endc")
    em.waitcnt(vm=0)
    SP.stamp("end")
    if SP.on:
        em.op("v_writelane_b32 v3, s89, 63")
    SP.dump()
    em.op("s_endpgm")
    print("ssm log:", F.qs[0].log)
    for name, loads, check in spins:
        em.label(f"SPIN_{name}")
        em.raw("  s_add_u32 s89, s89, 1")
        em.raw(f"  s_cmp_gt_u32 s89, {cfg.get('spinmax', 200000)}")
        em.raw(f"  s_cbranch_scc1 BACK_{name}")
        em.raw("  s_sleep 2")
        for l in loads:
            em.raw("  " + l)
        em.raw("  s_waitcnt vmcnt(0)")
        for c in check:
            em.raw("  " + c)
        em.raw("  s_nop 4")
        em.raw(f"  s_cbranch_vccnz SPIN_{name}")
        em.raw(f"  s_branch BACK_{name}")
```

```python
from common import *

GRID, BLOCK, VGPRS = 256, 576, 112


def k2(cfg):
    em = Emitter()
    em.raw(".globl k2_kernel\n.p2align 8\n.type k2_kernel,@function\nk2_kernel:")
    em.op(f"s_cmp_ge_u32 s2, {GRID}")
    em.op("s_cbranch_scc1 K2_END")
    em.raw("  s_load_dwordx2 s[48:49], s[0:1], 0")
    em.raw("  s_load_dwordx2 s[50:51], s[0:1], 64")
    em.raw("  s_load_dwordx4 s[52:55], s[0:1], 104")
    em.raw("  s_load_dwordx2 s[56:57], s[0:1], 128")
    em.op("v_lshrrev_b32 v1, 6, v0")
    em.op("v_and_b32 v0, 63, v0")
    em.op("v_readfirstlane_b32 s3, v1")
    em.op("s_and_b32 s4, s2, 3")
    em.op("s_mul_i32 s4, s4, 9")
    em.op("s_add_u32 s4, s4, s3")
    em.op("s_lshr_b32 s5, s2, 2")
    em.op("s_lshr_b32 s6, s5, 2")
    em.op("s_mul_i32 s6, s6, 60")
    em.op("s_add_u32 s6, s6, s5")
    em.op("s_mul_i32 s6, s6, 36")
    em.op("s_add_u32 s6, s6, s4")
    em.op("s_lshl_b32 s6, s6, 10")
    em.op("s_and_b32 s7, s4, 1")
    em.op("s_lshl_b32 s40, s5, 1")
    em.op("s_add_u32 s7, s7, s40")
    em.op("s_lshl_b32 s7, s7, 4")
    em.op("s_lshr_b32 s4, s4, 1")
    em.op("s_lshl_b32 s4, s4, 5")
    em.op("s_mul_i32 s40, s7, 576")
    em.op("s_add_u32 s40, s40, s4")
    em.op("s_lshl_b32 s41, s40, 1")
    em.op("s_lshl_b32 s42, s40, 2")
    em.op("s_lshl_b32 s43, s7, 2")
    em.op(f"s_add_u32 s43, s43, {WS_STATS}")
    em.op("s_lshl_b32 s44, s4, 1")
    vP, vX, vO, vS, vC = 1, 2, 3, 4, 5
    em.op(f"v_lshlrev_b32 v{vP}, 4, v0")
    em.op("v_lshrrev_b32 v6, 5, v0")
    em.op("v_and_b32 v7, 31, v0")
    em.op(f"v_lshlrev_b32 v{vC}, 1, v7")
    em.op(f"v_mul_u32_u24 v{vX}, {4*1152}, v6")
    em.op(f"v_add_u32 v{vX}, v{vX}, v{vC}")
    em.op(f"v_lshlrev_b32 v{vO}, 1, v{vX}")
    em.op(f"v_lshlrev_b32 v{vS}, 4, v6")
    for j in range(1, 16):
        em.op(f"s_mov_b32 s{60+j}, {147456*j}")
    em.op(f"s_mov_b32 s58, {8*1152}")
    em.raw("  s_waitcnt lgkmcnt(0)")
    if cfg.get("wsoff"):
        em.op(f"s_add_u32 s56, s56, {cfg['wsoff'] << 20}")
        em.op("s_addc_u32 s57, s57, 0")
    srd(em, 8, 56, "s6", 16 * 147456)
    P = 48
    order = cfg.get("k2order", list(range(16)))
    mod = cfg.get("k2ld", "")

    def pld(j):
        em.op(f"buffer_load_dwordx4 v[{P+4*j}:{P+4*j+3}], v{vP}, s[8:11], {'s%d' % (60+j) if j else 0} offen {mod}")
    NF = cfg.get("k2first", 4)
    for j in order[:NF]:
        pld(j)
    srd(em, 12, 48, "s41", 16 * 1152)
    srd(em, 16, 56, "s43", 64)
    srd(em, 20, 50, "s44", 64)
    srd(em, 24, 52, "s44", 64)
    X, STT, vD, vB = 8, 16, 6, 7
    em.op(f"buffer_load_dwordx4 v[{STT}:{STT+3}], v{vS}, s[16:19], 0 offen")
    em.op(f"buffer_load_dwordx4 v[{STT+4}:{STT+7}], v{vS}, s[16:19], 0 offen offset:32")
    for v in range(8):
        em.op(f"buffer_load_ushort v{X+v}, v{vX}, s[12:15], {'s58' if v >= 4 else 0} offen offset:{1152*(v%4)}")
    em.op(f"buffer_load_ushort v{vD}, v{vC}, s[20:23], 0 offen")
    em.op(f"buffer_load_ushort v{vB}, v{vC}, s[24:27], 0 offen")
    for j in order[NF:]:
        pld(j)
    srd(em, 28, 54, "s42", 16 * 2304)
    for g in range(1, 4):
        em.op(f"s_mov_b32 s{32+g}, {(2*(g%2) + 8*(g//2))*2304}")
    em.op("s_mov_b32 s36, 0x3f80")
    em.op("s_mov_b32 s37, 0x3f800000")
    em.op("s_mov_b32 s38, 0xffff0000")
    AM, AS, R = 24, 32, 40
    for v in range(8):
        em.op(f"v_mov_b32 v{AM+v}, 0")

    def acc(j):
        a = AM if j < 12 else AS
        for r in range(4):
            em.op(f"v_dot2c_f32_bf16 v{a+2*r}, s36, v{P+4*j+r}")
        for r in range(4):
            em.op(f"v_dot2c_f32_bf16 v{a+2*r+1}, s37, v{P+4*j+r}")
    assert all(j < 12 for j in order[:NF])
    for j in order[:NF]:
        acc(j)
    em.op(f"v_lshlrev_b32 v{vD}, 16, v{vD}")
    em.op(f"v_lshlrev_b32 v{vB}, 16, v{vB}")
    for v in range(8):
        em.op(f"v_and_b32 v{R+v}, s38, v{STT+v}")
        em.op(f"v_lshlrev_b32 v{STT+v}, 16, v{STT+v}")
        em.op(f"v_lshlrev_b32 v{X+v}, 16, v{X+v}")
        em.op(f"v_rcp_f32 v{R+v}, v{R+v}")
        em.op(f"v_add_f32 v{STT+v}, v{STT+v}, v{X+v}")

    def rnd(src, dst):
        for v in range(0, 8, 2):
            em.op(f"v_cvt_pk_bf16_f32 v{src+v}, v{src+v}, v{src+v+1}")
        for v in range(0, 8, 2):
            em.op(f"v_and_b32 v{dst+v+1}, s38, v{src+v}")
            em.op(f"v_lshlrev_b32 v{dst+v}, 16, v{src+v}")
    rnd(STT, STT)
    for v in range(8):
        em.op(f"v_mul_f32 v{STT+v}, v{STT+v}, v{R+v}")
    rnd(STT, STT)
    for v in range(8):
        em.op(f"v_mul_f32 v{STT+v}, v{STT+v}, v{vD}")
    rnd(STT, AS)
    rest = order[NF:]
    lastm = max(i for i, j in enumerate(rest) if j < 12)
    for i, j in enumerate(rest):
        acc(j)
        if i == lastm:
            for v in range(8):
                em.op(f"v_fma_f32 v{AM+v}, v{AM+v}, v{R+v}, v{vB}")
            for v in range(8):
                em.op(f"v_mul_f32 v{R+v}, {f32(-LOG2E)}, v{AM+v}")
            for v in range(8):
                em.op(f"v_exp_f32 v{R+v}, v{R+v}")
            for v in range(8):
                em.op(f"v_add_f32 v{R+v}, 1.0, v{R+v}")
            for v in range(8):
                em.op(f"v_rcp_f32 v{R+v}, v{R+v}")
            for v in range(8):
                em.op(f"v_mul_f32 v{AM+v}, v{AM+v}, v{R+v}")
    for v in range(8):
        em.op(f"v_fmac_f32 v{X+v}, v{AM+v}, v{AS+v}")
        g = v // 2
        em.op(f"buffer_store_dword v{X+v}, v{vO}, s[28:31], {'s%d' % (32+g) if g else 0} offen offset:{2304*(v%2)} {cfg.get('k2st', '')}")
    em.label("K2_END")
    em.op("s_endpgm")
    return em
```

```python
import sys, json
sys.path.insert(0, "gen")
from common import *
import k1_mlp

NAME = "recurrent_scan__ssm_conv_s5__dense_activation_gelu__prompt"

def desc(label, vgpr=256):
    return f""".p2align 6
.amdhsa_kernel {label}
  .amdhsa_next_free_vgpr {vgpr}
  .amdhsa_next_free_sgpr 102
  .amdhsa_accum_offset {vgpr}
  .amdhsa_group_segment_fixed_size 0
  .amdhsa_kernarg_size 136
  .amdhsa_user_sgpr_count 2
  .amdhsa_user_sgpr_kernarg_segment_ptr 1
  .amdhsa_system_sgpr_workgroup_id_x 1
.end_amdhsa_kernel
"""

def k1(cfg):
    em = Emitter()
    em.raw(".globl k1_kernel\n.p2align 8\n.type k1_kernel,@function\nk1_kernel:")
    em.op("s_cmp_ge_u32 s2, 256")
    em.op("s_cbranch_scc1 K1_END")
    em.raw(f"  s_load_dwordx16 s[{KA}:{KA+15}], s[0:1], 0")
    em.raw(f"  s_load_dwordx16 s[{KA+16}:{KA+31}], s[0:1], 64")
    em.raw(f"  s_load_dwordx2 s[{KA+32}:{KA+33}], s[0:1], 128")
    em.op("v_lshrrev_b32 v1, 6, v0")
    em.op("v_and_b32 v0, 63, v0")
    em.op(f"v_readfirstlane_b32 s{sW}, v1")
    mp = cfg.get("map", "8x4")
    if mp == "8x4":
        em.op("s_and_b32 s40, s2, 1")
        em.op("s_lshl_b32 s40, s40, 3")
        em.op("s_bfe_u32 s41, s2, 0x30003")
        em.op(f"s_add_u32 s{sRB}, s40, s41")
        em.op("s_bfe_u32 s40, s2, 0x20001")
        em.op("s_lshr_b32 s41, s2, 6")
        em.op("s_lshl_b32 s41, s41, 2")
        em.op(f"s_add_u32 s{sJ}, s40, s41")
    elif mp == "16x2":
        em.op(f"s_lshr_b32 s{sRB}, s2, 4")
        em.op(f"s_and_b32 s{sJ}, s2, 15")
    elif mp == "4x8":
        em.op("s_and_b32 s40, s2, 3")
        em.op("s_lshl_b32 s40, s40, 2")
        em.op("s_bfe_u32 s41, s2, 0x20003")
        em.op(f"s_add_u32 s{sRB}, s40, s41")
        em.op("s_bfe_u32 s40, s2, 0x10002")
        em.op("s_lshr_b32 s41, s2, 5")
        em.op("s_lshl_b32 s41, s41, 1")
        em.op(f"s_add_u32 s{sJ}, s40, s41")
    em.op(f"s_and_b32 s{sRG}, s{sW}, 3")
    em.op(f"s_lshr_b32 s{sHF}, s{sW}, 2")
    em.op(f"s_lshl_b32 s{sW1K}, s{sW}, 10")
    em.op(f"s_lshl_b32 s39, s{sW}, 11")
    em.op(f"s_lshl_b32 s40, s{sHF}, 1")
    em.op(f"s_xor_b32 s{sPI}, s{sRG}, s40")
    em.op(f"s_mov_b32 s{sONES}, 0x3f803f80")
    k1_mlp.lane_x_addr(em)
    em.raw("  s_waitcnt lgkmcnt(0)")
    if cfg.get("wsoff"):
        em.op(f"s_add_u32 s{ka(16)}, s{ka(16)}, {cfg['wsoff'] << 20}")
        em.op(f"s_addc_u32 s{ka(16)+1}, s{ka(16)+1}, 0")
    em.op(f"s_mul_i32 s40, s{sRB}, {128*1152}")
    srd(em, SRD_X, ka(0), "s40", 128 * 1152)
    em.op(f"s_cmp_ge_u32 s{sJ}, 12")
    em.op("s_cbranch_scc1 K1_SSM")
    st = em.fork_state()
    k1_mlp.mlp_path(em, cfg)
    em.label("K1_SSM")
    em.set_state(st)
    if cfg.get("ssm", True):
        import k1_ssm
        k1_ssm.ssm_paths(em, cfg)
    em.label("K1_END")
    em.op("s_endpgm")
    return em

def build(cfg, out):
    e1 = k1(cfg)
    txt = "; @launch kernel=k1_kernel grid=(256,1,1) block=(512,1,1) lds=163840\n"
    if cfg.get("k2", True):
        import k2
        txt += f"; @launch kernel=k2_kernel grid=({k2.GRID},1,1) block=({k2.BLOCK},1,1) lds=0\n"
    txt += '.amdgcn_target "amdgcn-amd-amdhsa--gfx950"\n.text\n.p2align 8\nCODE_BEGIN:\n'
    if cfg.get("k2", True):
        e2 = k2.k2(cfg)
        txt += e2.text()
    txt += e1.text() + "CODE_END:\n"
    txt += '.section .rodata,"a"\n' + desc("k1_kernel")
    if cfg.get("k2", True):
        txt += desc("k2_kernel", k2.VGPRS)
    open(out, "w").write(txt)
    print("k1 stats", e1.stats, "nops", e1.nnop, "bytes", len(txt))

if __name__ == "__main__":
    cfg = json.loads(sys.argv[2]) if len(sys.argv) > 2 else {}
    build(cfg, sys.argv[1] if len(sys.argv) > 1 else f"cdna_kernels/{NAME}.s")
```

```python
import struct
from emit import Emitter, Fillers, V, S

WS_P = 0
WS_STATS = 0x2400000
WS_E = 0x2410000

sW, sRG, sHF, sRB, sJ = 3, 4, 5, 6, 7
SRD_X, SRD_A, SRD_B, SRD_C, SRD_P, SRD_E, SRD_F = 8, 12, 16, 20, 24, 28, 32
sW1K, sONES, sPI = 36, 37, 38
sT0 = 40
KA = 48


def ka(i):
    return KA + 2 * i


def f32(x):
    return "0x%08x" % struct.unpack("<I", struct.pack("<f", x))[0]


class AddrSet:
    def __init__(self, em, regs, base=0):
        self.em, self.regs, self.base = em, list(regs), base

    def imm(self, addr, span=8192):
        if not (addr >= self.base and addr + span - self.base <= 65536):
            d = (addr - self.base) & 0xFFFFFFFF
            for r in self.regs:
                self.em.op(f"v_add_u32 v{r}, 0x{d:x}, v{r}")
            self.base = addr
        return addr - self.base


class TempS:
    def __init__(self, lo=sT0, n=8):
        self.lo, self.n, self.i = lo, n, 0

    def get(self):
        r = self.lo + self.i
        self.i = (self.i + 1) % self.n
        return r


def srd(em, dst, ptr, off_sgpr, nrec):
    if off_sgpr is None:
        em.op(f"s_mov_b32 s{dst}, s{ptr}")
        em.op(f"s_mov_b32 s{dst+1}, s{ptr+1}")
    else:
        em.op(f"s_add_u32 s{dst}, s{ptr}, {off_sgpr}")
        em.op(f"s_addc_u32 s{dst+1}, s{ptr+1}, 0")
    em.op(f"s_mov_b32 s{dst+2}, {nrec}")
    em.op(f"s_mov_b32 s{dst+3}, 0x00020000")


GELU_C1 = -2.0 * 0.7978845608028654 * 1.4426950408889634
GELU_C2 = GELU_C1 * 0.044715
LOG2E = 1.4426950408889634
INV2PI = 0.15915494309189535


class Stamps:
    def __init__(self, em, on):
        self.em, self.on, self.n = em, on, 0
        self.names = []

    def stamp(self, name=""):
        if not self.on:
            return
        em = self.em
        if self.n == 0:
            self.real(60)
        em.raw("  s_memtime s[84:85]")
        em.raw("  s_waitcnt lgkmcnt(0)")
        em.lg = []
        em.pos += 2
        em.raw(f"  v_writelane_b32 v3, s84, {self.n}")
        em.pos += 1
        self.names.append(name)
        self.n += 1

    def real(self, lane):
        if not self.on:
            return
        em = self.em
        em.raw("  s_memrealtime s[84:85]")
        em.raw("  s_waitcnt lgkmcnt(0)")
        em.lg = []
        em.raw(f"  v_writelane_b32 v3, s84, {lane}")
        em.pos += 3

    def dump(self):
        if not self.on:
            return
        em = self.em
        self.real(61)
        em.op("s_lshl_b32 s40, s2, 3")
        em.op(f"s_add_u32 s40, s40, s{sW}")
        em.op("s_lshl_b32 s40, s40, 8")
        em.op("s_add_u32 s40, s40, 0x2500000")
        srd(em, 88, ka(16), "s40", 256)
        em.op("v_mbcnt_lo_u32_b32 v1, -1, 0")
        em.op("v_mbcnt_hi_u32_b32 v1, -1, v1")
        em.op("v_lshlrev_b32 v1, 2, v1")
        em.op("buffer_store_dword v3, v1, s[88:91], 0 offen")
        print("stamps:", self.names)


_cp = [0]


def code_touch(em, cfg, dst=92):
    if not cfg.get("ctouch", 1):
        return
    _cp[0] += 1
    L = f"CT_{_cp[0]}"
    em.raw("  s_getpc_b64 s[88:89]")
    em.label(L)
    em.pos += 1
    em.op(f"s_sub_u32 s88, s88, {L}-CODE_BEGIN")
    em.op("s_subb_u32 s89, s89, 0")
    em.op("s_mov_b32 s90, CODE_END-CODE_BEGIN")
    em.op("s_mov_b32 s91, 0x00020000")
    em.op("s_andn2_b32 s40, s2, 7")
    em.op(f"s_add_u32 s40, s40, s{sW}")
    em.op("s_mul_i32 s40, s40, 320")
    em.op(f"v_lshlrev_b32 v{dst}, 6, v0")
    em.op("s_mov_b64 exec, 0x1f")
    em.op(f"buffer_load_dword v{dst}, v{dst}, s[88:91], s40 offen")
    em.op("s_mov_b64 exec, -1")
```

```python
from common import *
from emit import Sched, WAIT_SLOT, GAP, DONE, RATE

RING, NPOS, HX, MISC = 0, 13, 106496, 155648
CS, ST = MISC, MISC + 2048
NBUF = 4

vX0, vX1, vW1, vW2 = 4, 5, 6, 7
aQ, aW, aBo, aBp = 8, 12, 16, 17
vK1, vK2, vBc, vAc = 18, 19, 20, 22
vCSa = 24
vOB1, aCSw, aCSr, aHXw, aHXp, vP = 1, 2, 28, 29, 30, 31
SEL = 252
BUF = 32
vST = 48
ACC = [52, 68, 196, 212]
vH3 = 84
TG = 92
TX = 100
Q = 108
STG = [228, 236]


def lane_x_addr(em):
    em.op(f"s_lshl_b32 s40, s{sW}, 4")
    em.op("v_lshrrev_b32 v101, 3, v0")
    em.op("v_add_u32 v101, s40, v101")
    em.op("v_mul_u32_u24 v101, 0x480, v101")
    em.op("v_and_b32 v102, 7, v0")
    em.op("v_lshrrev_b32 v103, 4, v0")
    em.op("v_xor_b32 v102, v102, v103")
    em.op(f"v_lshl_add_u32 v{vX0}, v102, 4, v101")
    em.op(f"v_xor_b32 v{vX1}, 64, v{vX0}")
    em.op(f"v_add_u32 v{vX1}, 0x2400, v{vX1}")


def x_dma(em, cb, dst, gi):
    def f():
        em.op(f"s_add_u32 m0, s39, {dst + 1024*gi - 128*cb}")
        em.op(f"buffer_load_dwordx4 v{(vX0, vX1)[gi]}, s[{SRD_X}:{SRD_X+3}], 0 offen offset:{128*cb} lds", tag=("sig", cb))
    return f


def q_addr(em, regs):
    em.op("v_and_b32 v101, 31, v0")
    em.op(f"s_lshl_b32 s40, s{sRG}, 5")
    em.op("v_add_u32 v102, s40, v101")
    em.op("v_bfe_u32 v101, v0, 1, 3")
    em.op("v_lshrrev_b32 v103, 5, v0")
    em.op("v_xor_b32 v101, v101, v103")
    em.op(f"s_lshl_b32 s40, s{sPI}, 1")
    em.op("v_xor_b32 v101, s40, v101")
    em.op("v_lshlrev_b32 v101, 4, v101")
    em.op(f"v_lshl_add_u32 v{regs[0]}, v102, 7, v101")
    for i in (1, 2, 3):
        em.op(f"v_xor_b32 v{regs[i]}, {32*i}, v{regs[0]}")


def stats_finalize(tx, vneg, k1=None, k2=None, vr=None, vpack=None):
    s, q, t, u = tx, tx + 1, tx + 2, tx + 3
    L = [
        f"v_add_f32 v{tx}, v{tx}, v{tx+2}",
        f"v_add_f32 v{tx+1}, v{tx+1}, v{tx+3}",
        f"v_add_f32 v{tx+4}, v{tx+4}, v{tx+6}",
        f"v_add_f32 v{tx+5}, v{tx+5}, v{tx+7}",
        f"v_add_f32 v{s}, v{tx}, v{tx+4}",
        f"v_add_f32 v{q}, v{tx+1}, v{tx+5}",
        f"v_mul_f32 v{s}, {f32(1/576)}, v{s}",
        f"v_mul_f32 v{q}, {f32(1/576)}, v{q}",
        f"v_cvt_pk_bf16_f32 v{vneg}, -v{s}, -v{s}",
        f"v_fma_f32 v{q}, -v{s}, v{s}, v{q}",
        f"v_max_f32 v{q}, 0, v{q}",
        f"v_cvt_pk_bf16_f32 v{t}, v{q}, v{q}",
        f"v_lshlrev_b32 v{t}, 16, v{t}",
        f"v_add_f32 v{t}, {f32(1e-5)}, v{t}",
        f"v_cvt_pk_bf16_f32 v{t}, v{t}, v{t}",
        f"v_lshlrev_b32 v{t}, 16, v{t}",
        f"v_sqrt_f32 v{t}, v{t}",
        f"v_cvt_pk_bf16_f32 v{vneg+1}, v{t}, 0",
        f"v_lshlrev_b32 v{t}, 16, v{vneg+1}",
    ]
    r = vr if vr is not None else u
    L += [f"v_rcp_f32 v{r}, v{t}"]
    if vpack is not None:
        L += [f"v_and_b32 v{vpack}, 0xffff, v{vneg}", f"v_or_b32 v{vpack}, v{vpack}, v{t}"]
    if k1 is not None:
        L += [
            f"v_mul_f32 v{k1}, {f32(GELU_C1)}, v{r}",
            f"v_mul_f32 v{t}, v{r}, v{r}",
            f"v_mul_f32 v{k2}, {f32(0.044715)}, v{k1}",
            f"v_mul_f32 v{k2}, v{k2}, v{t}",
        ]
    return L


def sel_setup(em, sel):
    em.op(f"v_lshrrev_b32 v{sel}, 2, v0")
    em.op(f"v_xor_b32 v{sel}, v{sel}, v0")
    em.op(f"v_bfe_u32 v{sel}, v{sel}, 2, 1")
    em.op(f"v_add_u32 v{sel}, -1, v{sel}")
    em.op(f"v_and_b32 v{sel}, s{sONES}, v{sel}")
    for i in (1, 2, 3):
        em.op(f"v_mov_b32 v{sel+i}, v{sel}")


def hilo(tx, dst):
    return [
        f"v_add_f32 v{tx}, v{tx}, v{tx+1}",
        f"v_cvt_pk_bf16_f32 v{tx+1}, v{tx}, v{tx}",
        f"v_lshlrev_b32 v{tx+1}, 16, v{tx+1}",
        f"v_sub_f32 v{tx+2}, v{tx}, v{tx+1}",
        f"v_cvt_pk_bf16_f32 v{dst}, v{tx+1}, v{tx+2}",
    ]


def gelu(acc, out, mid=None, end=None):
    ops = [lambda t, a: f"v_mul_f32 v{t}, v{a}, v{a}",
           lambda t, a: f"v_fma_f32 v{t}, v{t}, v{vK2}, v{vK1}",
           lambda t, a: f"v_mul_f32 v{t}, v{t}, v{a}",
           lambda t, a: f"v_exp_f32 v{t}, v{t}",
           lambda t, a: f"v_add_f32 v{t}, 1.0, v{t}",
           lambda t, a: f"v_rcp_f32 v{t}, v{t}",
           lambda t, a: f"v_mul_f32 v{t}, v{t}, v{a}"]
    L = []
    for s in range(16 + 7):
        e = s - 8
        if e >= 0 and e % 2 == 0:
            L.append(f"v_cvt_pk_bf16_f32 v{out+e//2}, v{TG+e%8}, v{TG+(e+1)%8}")
        if s == 16 and mid:
            L += mid
        for k in (0, 3, 1, 2, 5, 4, 6):
            e = s - k
            if 0 <= e < 16:
                L.append(ops[k](TG + e % 8, acc + e))
        if s == 21 and end:
            L += end
    return L


def triple(k):
    return [HX, HX + 24576, RING + 81920, RING + 8192, RING + 32768, RING + 57344][k % 6]


def mlp_path(em, cfg):
    D = cfg.get("D", 3)
    RA = cfg.get("rateA", 5.3)
    STMOD = cfg.get("stmod", "sc1")
    N1, N2 = cfg.get("n1", 3), cfg.get("n2", 6)
    ts = TempS()
    SP = Stamps(em, cfg.get("stamps", False))
    SP.stamp("start")
    em.op(f"s_mul_i32 s40, s{sJ}, 768")
    em.op(f"s_sub_u32 s41, {576*9216}, s40")
    srd(em, SRD_A, ka(10), "s40", "s41")
    em.op(f"s_lshl_b32 s42, s{sW}, 3")
    em.op("v_lshrrev_b32 v101, 3, v0")
    em.op("v_add_u32 v101, s42, v101")
    em.op("v_and_b32 v102, 7, v0")
    em.op("v_bfe_u32 v103, v0, 4, 1")
    em.op("v_lshlrev_b32 v103, 2, v103")
    em.op("v_xor_b32 v102, v102, v103")
    em.op("v_lshlrev_b32 v102, 4, v102")
    em.op(f"v_mul_u32_u24 v{vW1}, 0x2400, v101")
    em.op(f"v_add_u32 v{vW1}, v{vW1}, v102")
    em.op(f"v_mul_u32_u24 v{vW2}, 0x480, v101")
    em.op(f"v_add_u32 v{vW2}, v{vW2}, v102")

    orderB = [(0, 0), (1, 0), (2, 0), (3, 0), (0, 1), (1, 1), (2, 1), (3, 1)]
    for dp in range(4, 9):
        orderB += [(dp, 0), (dp, 1)]
    NSIG = 108

    def pos_addr(sig):
        return triple(sig) + 16384 if sig < 9 else RING + 8192 * ((sig - 9) % NPOS)

    def w_dma(sig):
        if sig < 54:
            p, kb = divmod(sig, 9)
            so, v, sr = 64 * kb * 9216 + 128 * p, vW1, SRD_A
        else:
            ci, a = divmod(sig - 54, 3)
            dp, half = orderB[ci]
            so, v, sr = 64 * (3 * half + a) * 1152 + 128 * dp, vW2, SRD_B

        def f():
            t = ts.get()
            em.op(f"s_add_u32 m0, s{sW1K}, {pos_addr(sig)}")
            em.op(f"s_mov_b32 s{t}, {so}")
            em.op(f"buffer_load_dwordx4 v{v}, s[{sr}:{sr+3}], s{t} offen lds", tag=("sig", sig))
        return f

    DQ = []
    for kb in range(9):
        e = -1 if kb < 6 else kb - 4
        DQ += [(e, kb, x_dma(em, kb, triple(kb), 0)), (e, kb, x_dma(em, kb, triple(kb), 1)), (e, kb, w_dma(kb))]
    for sig in range(9, NSIG):
        e = -1 if sig == 9 else (5 + (sig - 10) // 3 if sig < 19 else max(10, sig - 11))
        DQ.append((e, sig, w_dma(sig)))
    lastbar = [-1]

    def dma_issue(k):
        c = 0
        while DQ and c < k and DQ[0][0] <= lastbar[0]:
            DQ.pop(0)[2]()
            c += 1
        return c

    dma_issue(3 * N1)
    code_touch(em, cfg)
    em.op(f"s_mul_i32 s40, s{sJ}, {384*1152}")
    srd(em, SRD_B, ka(12), "s40", 384 * 1152)
    em.op(f"s_mul_i32 s40, s{sJ}, 768")
    srd(em, SRD_C, ka(11), "s40", 768)
    em.op(f"s_lshl_b32 s40, s{sRB}, 4")
    em.op(f"s_add_u32 s40, s40, s{sJ}")
    em.op("s_lshl_b32 s40, s40, 2")
    em.op(f"s_add_u32 s40, s40, s{sRG}")
    em.op("s_mul_i32 s40, s40, 36864")
    srd(em, SRD_P, ka(16), "s40", 36864)
    em.op(f"s_lshl_b32 s40, s{sRB}, 9")
    em.op(f"s_lshl_b32 s41, s{sRG}, 7")
    em.op("s_add_u32 s40, s40, s41")
    em.op(f"s_add_u32 s40, s40, {WS_STATS}")
    em.op(f"s_or_b32 s41, s{sJ}, s{sHF}")
    em.op("s_cmp_eq_u32 s41, 0")
    em.op("s_cselect_b32 s41, 128, 0")
    srd(em, SRD_E, ka(16), "s40", "s41")
    q_addr(em, [aQ + i for i in range(4)])
    em.op("v_bfe_u32 v101, v0, 2, 2")
    em.op("v_lshrrev_b32 v102, 1, v101")
    em.op(f"v_xor_b32 v102, s{sHF}, v102")
    em.op("v_lshlrev_b32 v102, 6, v102")
    em.op("v_lshl_add_u32 v101, v101, 7, v102")
    em.op("v_bfe_u32 v102, v0, 4, 1")
    em.op("v_lshl_add_u32 v101, v102, 5, v101")
    em.op("v_and_b32 v102, 3, v0")
    em.op("v_lshl_add_u32 v101, v102, 3, v101")
    em.op("v_lshrrev_b32 v102, 5, v0")
    em.op("v_lshl_add_u32 v103, v102, 10, v101")
    em.op(f"s_lshl_b32 s40, s{sPI}, 11")
    em.op(f"v_add_u32 v{aW}, s40, v103")
    for b in (1, 2, 3):
        em.op(f"v_xor_b32 v{aW+b}, {2048*b}, v{aW}")
    em.op("v_lshl_add_u32 v103, v102, 9, v101")
    em.op(f"s_lshl_b32 s40, s{sHF}, 12")
    em.op(f"v_add_u32 v{aBo}, s40, v103")
    em.op(f"v_xor_b32 v{aBp}, 0x1000, v{aBo}")
    em.op("v_and_b32 v101, 31, v0")
    em.op(f"s_lshl_b32 s40, s{sHF}, 6")
    em.op("v_lshl_add_u32 v103, v101, 1, s40")
    em.op(f"v_lshl_add_u32 v{vOB1}, v102, 16, v103")
    em.op(f"s_lshl_b32 s40, s{sHF}, 9")
    em.op(f"s_add_u32 s40, s40, {CS}")
    em.op("v_lshl_add_u32 v103, v101, 4, s40")
    em.op(f"v_lshl_add_u32 v{aCSr}, v102, 3, v103")
    em.op(f"s_lshl_b32 s41, s{sRG}, 2")
    em.op(f"v_add_u32 v{aCSw}, s41, v103")
    sel_setup(em, SEL)
    em.op(f"s_mul_i32 s40, s{sW}, 6144")
    em.op(f"s_add_u32 s40, s40, {HX}")
    em.op(f"v_lshl_add_u32 v{aHXw}, v0, 4, s40")
    em.op(f"s_xor_b32 s41, s{sW}, 4")
    em.op("s_mul_i32 s41, s41, 6144")
    em.op(f"s_add_u32 s41, s41, {HX}")
    em.op(f"v_lshl_add_u32 v{aHXp}, v0, 4, s41")
    em.op(f"s_lshl_b32 s40, s{sHF}, 11")
    em.op(f"v_lshl_add_u32 v{vP}, v0, 4, s40")
    em.op(f"s_lshl_b32 s40, s{sRG}, 10")
    em.op(f"s_add_u32 s40, s40, {ST}")
    em.op("v_lshl_add_u32 v50, v101, 5, s40")
    em.op(f"s_lshl_b32 s41, s{sHF}, 4")
    em.op("v_lshl_add_u32 v51, v102, 3, v50")
    em.op("v_add_u32 v51, s41, v51")
    for r in (vST, vST + 1):
        em.op(f"v_mov_b32 v{r}, 0")
    em.op(f"buffer_load_ushort v{vAc+1}, v{vOB1}, s[{SRD_C}:{SRD_C+3}], 0 offen")

    dma_issue(3 * (N2 - N1))

    AQ = AddrSet(em, [aQ + i for i in range(4)])
    AW = AddrSet(em, [aW + i for i in range(4)])
    AB = AddrSet(em, [aBo, aBp])

    def Hreg(o, p, s):
        if p < 3:
            return 124 + (p * 2 + o) * 8 + 4 * s
        if o == 0:
            return {3: vH3, 4: 108, 5: 116}[p] + 4 * s
        return 172 + (p - 3) * 8 + 4 * s

    accB = {}
    for dp in range(9):
        accB[dp] = ACC[[0, 2, 3, 1][dp % 4]]

    steps = []
    for p in range(6):
        for kb in range(9):
            for b in range(4):
                steps.append(dict(ph="A", sig=9 * p + kb, b=b, p=p, kb=kb))
    for ci, (dp, half) in enumerate(orderB):
        for a in range(3):
            for o in range(2):
                for s in range(2):
                    steps.append(dict(ph="B", sig=54 + 3 * ci + a, dp=dp, half=half, a=a, o=o, s=s))
    N = len(steps)
    F = Sched(em)

    def corr_and_gelu(p):
        acc = ACC[p % 2]
        out = vH3 if p <= 3 else Hreg(0, p, 0)
        L = [RATE(RA + (0.9 if p == 0 else 0))]
        L += [f"ds_read_b64 v[{TG}:{TG+1}], v{aCSr}"]
        if p == 0:
            L += [f"ds_read_b128 v[{TX}:{TX+3}], v50", f"ds_read_b128 v[{TX+4}:{TX+7}], v50 offset:16"]
        L += [GAP(2)]
        L += hilo(TG, vAc)
        if p == 0:
            L += stats_finalize(TX, vBc, vK1, vK2, vpack=TX + 4)
        L += [WAIT_SLOT(36 * (p + 1))]
        L += [f"v_mfma_f32_32x32x8_bf16 v[{acc}:{acc+15}], v[{vAc}:{vAc+1}], v[{vBc}:{vBc+1}], v[{acc}:{acc+15}]"]
        if p < 5:
            L += [f"buffer_load_ushort v{vAc+1}, v{vOB1}, s[{SRD_C}:{SRD_C+3}], 0 offen offset:{128*(p+1)}"]
        if p == 0:
            L += [f"v_lshlrev_b32 v{TX+5}, 2, v0",
                  f"buffer_store_dword v{TX+4}, v{TX+5}, s[{SRD_E}:{SRD_E+3}], 0 offen sc1"]
        L += [GAP(1)]
        hx = p if p < 3 else (2 if p == 5 else None)
        mid = [(f"ds_write_b128 v{aHXw}, v[{out}:{out+3}] offset:{2048*hx}", "hx")] if hx is not None else None
        L += gelu(acc, out, mid, [DONE(("acc", p))])
        if hx is not None:
            L += [(f"ds_write_b128 v{aHXw}, v[{out+4}:{out+7}] offset:{2048*hx+1024}", "hx")]
        L += [DONE(("gelu", p))]
        return L

    def epilogue(dp, k):
        acc = accB[dp]
        stg = STG[k % 2]
        L = [RATE(cfg.get("rateE", 2)), GAP(2)]

        def st(h):
            def f():
                t = ts.get()
                em.op(f"s_mov_b32 s{t}, {4096*dp+1024*h}")
                em.op(f"buffer_store_dwordx4 v[{stg+4*h}:{stg+4*h+3}], v{vP}, s[{SRD_P}:{SRD_P+3}], s{t} offen {STMOD}", tag="st")
            return f
        cv = [f"v_cvt_pk_bf16_f32 v{stg+i}, v{acc+2*i}, v{acc+2*i+1}" for i in range(8)]
        L += cv[:4] + [st(0)] + cv[4:] + [DONE(("ep", dp)), GAP(cfg.get("stgap", 2)), st(1)]
        return L

    bars = list(range(0, 10)) + list(range(10, NSIG, 3))

    def barrier_event(sg):
        i = bars.index(sg)
        nx = bars[i + 1] if i + 1 < len(bars) else NSIG
        while DQ and DQ[0][1] < nx:
            assert DQ[0][0] <= lastbar[0]
            dma_issue(1)
        if sg == 64:
            F.flush_until(("gelu", 5))
        em.wait_lg_tag(["cs", "hx", "hr"])
        em.wait_tag([("sig", s) for s in range(sg, nx)])
        em.barrier()
        lastbar[0] = sg
        if cfg.get("stamps") and (sg % 3 == 1 or sg == 0):
            SP.stamp(f"bar{sg}")
        if sg % 9 == 1 and 10 <= sg <= 55:
            F.add(corr_and_gelu(sg // 9 - 1))
        if sg == 55:
            for p in (3, 4):
                for s in range(2):
                    r = Hreg(0, p, s)
                    pend_hx.append((f"ds_write_b128 v{aHXw}, v[{r}:{r+3}] offset:{2048*(p-3)+1024*s}", "hx"))
        if sg == 61:
            assert not pend_hx
            for p in (3, 4):
                for s in range(2):
                    r = Hreg(1, p, s)
                    pend_rd.append(f"ds_read_b128 v[{r}:{r+3}], v{aHXp} offset:{2048*(p-3)+1024*s}")
        if sg == 64:
            for s in range(2):
                r = Hreg(1, 5, s)
                pend_rd.append(f"ds_read_b128 v[{r}:{r+3}], v{aHXp} offset:{2048*2+1024*s}")

    def reads(m):
        st = steps[m]
        bf = BUF + 4 * (m % NBUF)
        if st["ph"] == "A":
            if st["p"] == 0:
                off = AQ.imm(triple(st["kb"]), 16384)
                em.op(f"ds_read_b128 v[{Q+4*m}:{Q+4*m+3}], v{aQ+st['b']} offset:{off}")
            off = AW.imm(pos_addr(st["sig"]))
            a = aW + st["b"]
            em.op(f"ds_read_b64_tr_b16 v[{bf}:{bf+1}], v{a} offset:{off}")
            em.op(f"ds_read_b64_tr_b16 v[{bf+2}:{bf+3}], v{a} offset:{off+512}")
        else:
            off = AB.imm(pos_addr(st["sig"])) + 2048 * st["s"]
            a = aBp if st["o"] else aBo
            em.op(f"ds_read_b64_tr_b16 v[{bf}:{bf+1}], v{a} offset:{off}")
            em.op(f"ds_read_b64_tr_b16 v[{bf+2}:{bf+3}], v{a} offset:{off+1024}")

    pend_hx, pend_rd = [], []
    nep = [0]
    barrier_event(0)
    for n in range(-D, N):
        m = n + D
        if n >= 0:
            st = steps[n]
            bf = BUF + 4 * (n % NBUF)
            if st["ph"] == "A":
                acc = ACC[st["p"] % 2]
                first = (st["kb"] == 0 and st["b"] == 0)
                if first and st["p"] >= 2:
                    F.flush_until(("acc", st["p"] - 2))
                q = Q + 16 * st["kb"] + 4 * st["b"]
                c = "0" if first else f"v[{acc}:{acc+15}]"
                em.op(f"v_mfma_f32_32x32x16_bf16 v[{acc}:{acc+15}], v[{bf}:{bf+3}], v[{q}:{q+3}], {c}")
                if st["b"] == 0:
                    c = "0" if st["kb"] == 0 else f"v[{vCSa}:{vCSa+3}]"
                    em.op(f"v_mfma_f32_16x16x32_bf16 v[{vCSa}:{vCSa+3}], v[{SEL}:{SEL+3}], v[{bf}:{bf+3}], {c}")
            else:
                acc = accB[st["dp"]]
                first = (st["half"] == 0 and st["a"] == 0 and st["o"] == 0 and st["s"] == 0)
                if n == 216:
                    F.flush_until(("acc", 4))
                if n == 216 + 36:
                    F.flush_until(("acc", 5))
                if first and st["dp"] >= 4:
                    F.flush_until(("ep", st["dp"] - 4))
                hr = Hreg(st["o"], 3 * st["half"] + st["a"], st["s"])
                c = "0" if first else f"v[{acc}:{acc+15}]"
                em.op(f"v_mfma_f32_32x32x16_bf16 v[{acc}:{acc+15}], v[{hr}:{hr+3}], v[{bf}:{bf+3}], {c}")
                if st["half"] == 1 and st["a"] == 2 and st["o"] == 1 and st["s"] == 1:
                    F.add(epilogue(st["dp"], nep[0]))
                    nep[0] += 1
            F.cur = n + 1
        if m < N:
            reads(m)
        if (m + 1) % 4 == 0 and (m + 1) // 4 in bars:
            barrier_event((m + 1) // 4)
            if n >= 36:
                continue
        if n < 0:
            continue
        nd = dma_issue(2 if n < 40 else 1)
        if st["ph"] == "A":
            if st["p"] == 0 and st["b"] < 2:
                for r in range(4):
                    em.op(f"v_dot2c_f32_bf16 v{vST}, s{sONES}, v{q+r}")
                    em.op(f"v_dot2c_f32_bf16 v{vST+1}, v{q+r}, v{q+r}")
            if n == cfg.get("pfA", 50):
                em.op(f"s_and_b32 s40, s{sRB}, 7")
                em.op("s_lshl_b32 s40, s40, 3")
                em.op(f"s_add_u32 s40, s40, s{sW}")
                em.op("s_mul_i32 s40, s40, 6912")
                em.op(f"v_min_u32 v{vST}, 53, v0")
                em.op(f"v_lshlrev_b32 v{vST}, 7, v{vST}")
                em.op(f"buffer_load_dword v{vST+1}, v{vST}, s[{SRD_B}:{SRD_B+3}], s40 offen")
                em.op(f"buffer_load_dword v51, v{vST}, s[{SRD_B}:{SRD_B+3}], s40 offen offset:64")
            if n % 36 == 34:
                em.op(f"ds_write_b32 v{aCSw}, v{vCSa}", tag="cs")
                if n == 34:
                    em.op(f"ds_write_b64 v51, v[{vST}:{vST+1}]", tag="cs")
            if st["p"] == 5 and n - 180 == 16:
                for k in range(12):
                    p, o, s = k // 4, (k // 2) % 2, k % 2
                    r = Hreg(o, p, s)
                    pend_rd.append(f"ds_read_b128 v[{r}:{r+3}], v{aHXp if o else aHXw} offset:{2048*p+1024*s}")
        elif pend_hx and n % 4 == 2 and ("gelu", 4) in F.done:
            it = pend_hx.pop(0)
            em.op(it[0], tag=it[1])
        if pend_rd:
            em.op(pend_rd.pop(0), tag="hr")
        F.tick(cfg.get("dmascale", 0.7) if nd else 1.0)
    F.flush()
    SP.stamp("endc")
    em.waitcnt(vm=0)
    SP.stamp("end")
    SP.dump()
    em.op("s_endpgm")
```

```python
from common import *
from emit import Multi, WAIT_SLOT, GAP, DONE, UNTIL, BAR
from k1_mlp import x_dma, triple, stats_finalize, sel_setup, hilo, RING, NPOS, HX, vX0, vX1

IMG = HX
TAB = 139264
CS = 159744
EX = 160768
RT = 162816
ST = IMG

vL, aCSr, aW, vNeg, aCSw, aRT, aT0, aTs, aG, aIM, aH = 6, 7, 8, 12, 13, 14, 15, 16, 17, 18, 19
vCSa, SEL, BUF, NBUF = 20, 24, 28, 3
SETS = [44, 60, 76]
TA = 92
PRE = [104, 106]
Q = 108
PD = [40, 42, 252, 254]
K1, K2, KT = 0, 4, 2
HA, ACC2, HB0, HC = Q, Q + 32, Q + 128, 20
STG = [92, 100]
vP, aC4, vL4 = 7, 12, 13
sQ, sT4, sC4, sMASK = 82, 83, 86, 87
sHI = 90
SRD_C4, SRD_D = 92, 96
sS1, sDB = 100, 101


def tab(k, ent):
    return 4096 * (4 - k) + 256 * ent


def cfma(d, a, b):
    return [f"v_fmac_f32 v{d}, v{a}, v{b}", f"v_fmac_f32 v{d+1}, v{a}, v{b+1}",
            f"v_fma_f32 v{d}, -v{a+1}, v{b+1}, v{d}", f"v_fmac_f32 v{d+1}, v{a+1}, v{b}"]


def cmul(d, a, b):
    return [f"v_mul_f32 v{d}, v{a}, v{b}", f"v_mul_f32 v{d+1}, v{a}, v{b+1}",
            f"v_fma_f32 v{d}, -v{a+1}, v{b+1}, v{d}", f"v_fmac_f32 v{d+1}, v{a+1}, v{b}"]


def cmul_ip(re, im, c, t):
    return [f"v_mul_f32 v{t}, v{c+1}, v{re}", f"v_mul_f32 v{re}, v{c}, v{re}",
            f"v_fma_f32 v{re}, -v{c+1}, v{im}, v{re}", f"v_fma_f32 v{im}, v{c}, v{im}, v{t}"]


def frag_addr(em, regs, srow, tau):
    em.op("v_and_b32 v101, 31, v0")
    if tau:
        em.op("v_lshrrev_b32 v102, 1, v0")
        em.op("v_xor_b32 v102, v102, v0")
        em.op("v_bfe_u32 v102, v102, 2, 1")
        em.op("v_mul_u32_u24 v102, 12, v102")
        em.op("v_xor_b32 v101, v101, v102")
    em.op(f"s_lshl_b32 s40, s{srow}, 5")
    em.op("v_add_u32 v102, s40, v101")
    em.op("v_bfe_u32 v103, v101, 1, 3")
    em.op("v_lshrrev_b32 v100, 5, v0")
    em.op("v_xor_b32 v103, v103, v100")
    em.op(f"s_lshl_b32 s40, s{sPI}, 1")
    em.op("v_xor_b32 v103, s40, v103")
    em.op("v_lshlrev_b32 v103, 4, v103")
    em.op(f"v_lshl_add_u32 v{regs[0]}, v102, 7, v103")
    for i in (1, 2, 3):
        em.op(f"v_xor_b32 v{regs[i]}, {32*i}, v{regs[0]}")


def ssm_paths(em, cfg):
    D = 2
    STMOD = cfg.get("stmod", "sc1")
    N1, N2 = cfg.get("n1", 3), cfg.get("n2", 6)
    NA = 6
    ts = TempS()
    SP = Stamps(em, cfg.get("stamps", False))
    SP.stamp("start")
    BSZ = 576 * 1152
    em.op(f"s_sub_u32 s{sQ}, s{sJ}, 12")
    em.op(f"s_bitcmp1_b32 s{sW}, 1")
    em.op(f"s_cselect_b32 s44, s{ka(4)}, s{ka(3)}")
    em.op(f"s_cselect_b32 s45, s{ka(4)+1}, s{ka(3)+1}")
    em.op(f"s_cselect_b32 s46, s{ka(6)}, s{ka(5)}")
    em.op(f"s_cselect_b32 s47, s{ka(6)+1}, s{ka(5)+1}")
    em.op(f"s_lshl_b32 s40, s{sQ}, 4")
    em.op(f"s_lshl_b32 s41, s{sHF}, 1")
    em.op("s_add_u32 s40, s40, s41")
    em.op(f"s_and_b32 s42, s{sW}, 1")
    em.op("s_add_u32 s40, s40, s42")
    em.op(f"s_mul_i32 s40, s40, {8*1152}")
    em.op(f"s_sub_u32 s41, {BSZ}, s40")
    srd(em, SRD_A, 44, "s40", "s41")
    em.op("v_lshrrev_b32 v101, 3, v0")
    em.op("v_mul_u32_u24 v101, 0x480, v101")
    em.op("v_lshrrev_b32 v102, 4, v0")
    em.op("v_xor_b32 v102, v102, v0")
    em.op("s_lshl_b32 s42, s42, 2")
    em.op("v_xor_b32 v102, s42, v102")
    em.op("v_and_b32 v102, 7, v102")
    em.op(f"v_lshl_add_u32 v{vL}, v102, 4, v101")
    em.op(f"s_lshl_b32 s40, s{sQ}, 5")
    em.op("s_add_u32 s40, s40, 1024")
    em.op(f"s_sub_u32 s41, {BSZ}, s40")
    srd(em, SRD_C4, 46, "s40", "s41")

    slots = [("S1", k, kb) for k in range(5) for kb in range(9)]
    for P in range(2):
        for dp in range(NA):
            slots += [("AB", dp, P, 0), ("AB", dp, P, 1)]
    slots += [("C4", i) for i in range(NA // 2)]
    for dp in range(NA, 9):
        slots += [("AB", dp, P, c) for P in range(2) for c in range(2)]
        if dp % 2 == 1 or dp == 8:
            slots.append(("C4", dp // 2))
    NSIG = len(slots)

    def pos_addr(sig):
        return triple(sig) + 16384 if sig < 9 else RING + 8192 * ((sig - 9) % NPOS)

    def w_dma(sig):
        sl = slots[sig]

        def f():
            t = ts.get()
            em.op(f"s_add_u32 m0, s{sW1K}, {pos_addr(sig)}")
            v = vL
            if sl[0] == "S1":
                sr = SRD_A
                if sl[1] < 4:
                    em.op(f"s_mov_b32 s{t}, {sl[1]*32*1152 + 128*sl[2]}")
                else:
                    em.op(f"s_add_u32 s{t}, s{sT4}, {128*sl[2]}")
            elif sl[0] == "AB":
                sr = (SRD_B, SRD_C)[sl[3]]
                em.op(f"s_mov_b32 s{t}, {sl[1]*64*1152 + 128*sl[2]}")
            else:
                F.need("s2addr")
                sr, v = SRD_C4, vL4
                if sl[1] < 4:
                    em.op(f"s_add_u32 s{t}, s{sC4}, {sl[1]*128*1152}")
                else:
                    em.op(f"s_mov_b32 s{t}, {8*64*1152}")
            em.op(f"buffer_load_dwordx4 v{v}, s[{sr}:{sr+3}], s{t} offen lds", tag=("sig", sig))
        return f

    DQ = []
    for kb in range(9):
        e = -1 if kb < 6 else kb - 4
        DQ += [(e, kb, x_dma(em, kb, triple(kb), 0)), (e, kb, x_dma(em, kb, triple(kb), 1)), (e, kb, w_dma(kb))]
    for sig in range(9, NSIG):
        e = -1 if sig == 9 else (5 + (sig - 10) // 3 if sig < 19 else max(10, sig - 11))
        DQ.append((e, sig, w_dma(sig)))
    lastbar = [-1]

    def dma_issue(k):
        c = 0
        while DQ and c < k and DQ[0][0] <= lastbar[0]:
            DQ.pop(0)[2]()
            c += 1
        return c

    dma_issue(3 * N1)
    code_touch(em, cfg)
    RAW = SETS[2]
    vN, vU0 = SETS[2] + 15, SETS[1]
    em.op("v_and_b32 v101, 31, v0")
    em.op(f"s_lshl_b32 s40, s{sQ}, 8")
    em.op("v_lshl_add_u32 v102, v101, 1, s40")
    em.op("v_and_b32 v103, 15, v0")
    em.op(f"s_lshl_b32 s40, s{sQ}, 5")
    em.op("v_lshl_add_u32 v103, v103, 1, s40")
    for i, p in enumerate((1, 2, 7)):
        srd(em, SRD_D, ka(p), None, 1152)
        for k in range(5):
            a, o = (102, 64 * k) if k < 4 else (103, 1024)
            em.op(f"buffer_load_ushort v{RAW+2*k+i if i < 2 else RAW+10+k}, v{a}, s[{SRD_D}:{SRD_D+3}], 0 offen offset:{o}")
    em.op("v_and_b32 v101, 15, v0")
    em.op(f"s_lshl_b32 s40, s{sHF}, 7")
    em.op(f"s_add_u32 s40, s40, {TAB}")
    em.op(f"v_lshl_add_u32 v{aT0}, v101, 3, s40")
    em.op("v_bfe_u32 v102, v0, 4, 1")
    em.op("v_lshrrev_b32 v103, 5, v0")
    em.op("v_lshl_add_u32 v102, v102, 1, v103")
    em.op(f"v_lshl_add_u32 v{aTs}, v102, 8, v{aT0}")
    em.op(f"s_lshl_b32 s40, s{sRG}, 8")
    em.op(f"v_add_u32 v{aG}, s40, v{aT0}")
    em.op(f"s_lshl_b32 s40, s{sW}, 7")
    em.op(f"s_add_u32 s40, s40, {RT}")
    em.op(f"v_lshl_add_u32 v{aRT}, v102, 5, s40")
    em.op(f"s_lshl_b32 s40, s{sRG}, 12")
    em.op(f"s_add_u32 s40, s40, {IMG}")
    em.op(f"s_lshl_b32 s41, s{sHF}, 11")
    em.op("s_add_u32 s41, s41, s40")
    em.op("v_lshl_add_u32 v101, v101, 6, s41")
    em.op(f"v_lshl_add_u32 v{aIM}, v102, 4, v101")
    em.op("v_lshl_add_u32 v101, v103, 9, s40")
    em.op("v_bfe_u32 v102, v0, 2, 2")
    em.op("v_lshl_add_u32 v101, v102, 6, v101")
    em.op("v_bfe_u32 v102, v0, 4, 1")
    em.op("v_lshl_add_u32 v101, v102, 5, v101")
    em.op("v_and_b32 v102, 3, v0")
    em.op(f"v_lshl_add_u32 v{aH}, v102, 3, v101")
    em.op(f"s_mul_i32 s40, s{sQ}, {5*4096}")
    em.op(f"s_lshl_b32 s41, s{sRB}, 8")
    em.op("s_sub_u32 s40, s40, s41")
    em.op(f"s_add_u32 s40, s40, {WS_E + 15*256 - TAB + 4*4096}")
    em.op(f"s_cmp_eq_u32 s{sRG}, 3")
    em.op(f"s_cselect_b32 s42, {TAB+256}, 0")
    em.op("s_cselect_b32 s43, 0, 0x1000")
    srd(em, SRD_E, ka(16), "s40", "s42")
    em.op("v_mov_b32 v102, -1")
    em.op("v_mov_b32 v103, -1")
    for k in range(5):
        em.op(f"buffer_store_dwordx2 v[102:103], v{aTs}, s[{SRD_E}:{SRD_E+3}], 0 offen sc1", tag="clean")
        if k < 4:
            em.op(f"s_sub_u32 s{SRD_E}, s{SRD_E}, 4096")
            em.op(f"s_subb_u32 s{SRD_E+1}, s{SRD_E+1}, 0")
    em.op(f"s_sub_u32 s40, s40, {4*4096 - 256}")
    em.op(f"s_add_u32 s41, s41, {TAB}")
    srd(em, SRD_F, ka(16), "s40", "s41")
    srd(em, SRD_D, ka(15), None, 256)
    em.op(f"s_lshl_b32 s40, s{sQ}, 1")
    em.op(f"s_add_u32 s40, s40, s{sHF}")
    em.op(f"s_lshl_b32 s{sDB}, s40, 5")
    vFo, vFb = SETS[1] + 2, SETS[1] + 3
    em.op(f"s_add_u32 s43, s43, s{sDB}")
    em.op(f"v_mov_b32 v{vFo}, s43")
    em.op(f"s_lshl_b32 s40, 1, s{sRB}")
    em.op(f"v_mov_b32 v{vFb}, s40")
    em.op(f"s_sub_u32 s{sMASK}, s40, 1")
    dma_issue(3 * (N2 - N1))
    em.op(f"s_mul_i32 s40, s{sW}, {8*1152}")
    em.op(f"s_lshl_b32 s41, s{sQ}, 8")
    em.op("s_add_u32 s40, s40, s41")
    em.op(f"s_sub_u32 s41, {BSZ}, s40")
    srd(em, SRD_B, ka(5), "s40", "s41")
    srd(em, SRD_C, ka(6), "s40", "s41")
    em.op(f"s_lshl_b32 s40, s{sRB}, 4")
    em.op(f"s_add_u32 s40, s40, s{sJ}")
    em.op("s_lshl_b32 s40, s40, 2")
    em.op(f"s_add_u32 s40, s40, s{sRG}")
    em.op("s_mul_i32 s40, s40, 36864")
    srd(em, SRD_P, ka(16), "s40", 36864)
    em.op(f"s_mul_i32 s40, s{sQ}, 7")
    em.op(f"s_add_u32 s40, s40, s{sHF}")
    em.op("s_sub_u32 s40, 32, s40")
    em.op(f"s_mul_i32 s{sT4}, s40, {16*1152}")
    em.op(f"s_mul_i32 s{sC4}, s{sHF}, {64*1152}")
    em.op(f"s_mov_b32 s{sHI}, 0")
    em.op("s_mov_b32 s89, 0")
    em.op(f"s_mov_b32 s{sHI+1}, -1")
    aQ = SETS[1] + 4
    frag_addr(em, [aW + i for i in range(4)], sHF, False)
    frag_addr(em, [aQ + i for i in range(4)], sRG, True)
    aRw, aSr, aSw, vST, aTw = 1, 2, SETS[1] + 10, SETS[1] + 12, PRE[1]
    em.op(f"s_lshl_b32 s40, s{sW}, 7")
    em.op(f"s_add_u32 s40, s40, {RT}")
    em.op(f"v_lshl_add_u32 v{aRw}, v101, 2, s40")
    em.op("v_and_b32 v101, 31, v0")
    em.op(f"s_lshl_b32 s40, s{sHF}, 9")
    em.op(f"s_add_u32 s40, s40, {CS}")
    em.op("v_lshl_add_u32 v103, v101, 4, s40")
    em.op(f"v_lshl_add_u32 v{aCSr}, v100, 3, v103")
    em.op(f"s_lshl_b32 s41, s{sRG}, 2")
    em.op(f"v_add_u32 v{aCSw}, s41, v103")
    em.op(f"s_lshl_b32 s40, s{sRG}, 10")
    em.op(f"s_add_u32 s40, s40, {ST}")
    em.op(f"v_lshl_add_u32 v{aSr}, v101, 5, s40")
    em.op(f"s_lshl_b32 s41, s{sHF}, 4")
    em.op(f"v_lshl_add_u32 v{aSw}, v100, 3, v{aSr}")
    em.op(f"v_add_u32 v{aSw}, s41, v{aSw}")
    sel_setup(em, SEL)
    em.op(f"v_mov_b32 v{vST}, 0")
    em.op(f"v_mov_b32 v{vST+1}, 0")
    em.op(f"ds_write_b64 v{aG}, v[{vST}:{vST+1}] offset:{EX-TAB}", tag="ex")
    em.op(f"s_lshl_b32 s40, s{sW}, 9")
    em.op(f"s_add_u32 s40, s40, {TAB}")
    em.op(f"v_lshl_add_u32 v{aTw}, v0, 3, s40")
    em.op(f"s_lshr_b32 s40, s{sW}, 1")
    em.op("s_lshl_b32 s41, s40, 3")
    em.op("s_lshr_b32 s41, 0x20800800, s41")
    em.op("s_and_b32 s41, s41, 0xff")
    em.op(f"s_and_b32 s42, s{sW}, 1")
    em.op("s_mul_i32 s42, s42, s41")
    em.op("s_lshl_b32 s42, s42, 1")
    em.op("s_cmp_eq_u32 s40, 0")
    em.op("s_cselect_b32 s41, 511, s41")
    em.op("s_cselect_b32 s42, 1, s42")
    em.op(f"v_mul_u32_u24 v{vN}, s41, v100")
    em.op(f"v_add_u32 v{vN}, s42, v{vN}")
    em.op(f"v_cvt_f32_u32 v{vN}, v{vN}")
    em.op("s_cmp_eq_u32 s40, 2")
    em.op(f"s_cselect_b32 s{sS1}, 1.0, 0")
    em.op("s_cselect_b32 s41, 0, 1.0")
    em.op(f"s_cmp_eq_u32 s{sW}, 1")
    em.op("s_cselect_b32 s41, 0, s41")
    vU0 = PRE[1] + 1
    em.op(f"v_mov_b32 v{vU0}, s41")

    AQ = AddrSet(em, [aQ + i for i in range(4)])
    AW = AddrSet(em, [aW + i for i in range(4)])
    AC4 = AddrSet(em, [aC4])
    F = Multi(em, 2, cfg.get("rateS", 6.0))
    Q1, Q2 = F.qs

    def table_job(k):
        lr, li, ld = RAW + 2 * k, RAW + 2 * k + 1, RAW + 10 + k
        a, b, x, y = PD[0], PD[0] + 1, PD[1], PD[1] + 1
        u, w, cr, ci = PD[2], PD[2] + 1, PD[3], PD[3] + 1
        L = [f"v_lshlrev_b32 v{ld}, 16, v{ld}", f"v_lshlrev_b32 v{lr}, 16, v{lr}", f"v_lshlrev_b32 v{li}, 16, v{li}",
             f"v_mul_f32 v{ld}, {f32(LOG2E)}, v{ld}", f"v_exp_f32 v{ld}, v{ld}",
             f"v_mul_f32 v{u}, v{lr}, v{lr}", f"v_fmac_f32 v{u}, v{li}, v{li}",
             f"v_cvt_pk_bf16_f32 v{ld}, v{ld}, v{ld}", f"v_rcp_f32 v{u}, v{u}", f"v_lshlrev_b32 v{ld}, 16, v{ld}",
             f"v_mul_f32 v{a}, v{ld}, v{lr}", f"v_mul_f32 v{b}, v{ld}, v{li}",
             f"v_mul_f32 v{a}, {f32(LOG2E)}, v{a}", f"v_mul_f32 v{b}, {f32(INV2PI)}, v{b}",
             f"v_exp_f32 v{w}, v{a}", f"v_fract_f32 v{ld}, v{b}", f"v_cos_f32 v{x}, v{ld}", f"v_sin_f32 v{y}, v{ld}",
             f"v_mul_f32 v{u}, s{sS1}, v{u}", f"v_add_f32 v{u}, v{u}, v{u}",
             f"v_fma_f32 v{x}, v{x}, v{w}, -1.0", f"v_mul_f32 v{y}, v{y}, v{w}",
             f"v_mul_f32 v{a}, v{vN}, v{a}", f"v_mul_f32 v{b}, v{vN}, v{b}",
             f"v_mul_f32 v{cr}, v{x}, v{lr}", f"v_mul_f32 v{ci}, v{y}, v{lr}",
             f"v_exp_f32 v{a}, v{a}", f"v_fract_f32 v{b}, v{b}",
             f"v_fmac_f32 v{cr}, v{y}, v{li}", f"v_fma_f32 v{ci}, -v{x}, v{li}, v{ci}",
             f"v_cos_f32 v{x}, v{b}", f"v_sin_f32 v{y}, v{b}",
             f"v_fma_f32 v{cr}, v{cr}, v{u}, v{vU0}", f"v_mul_f32 v{ci}, v{ci}, v{u}",
             f"v_mul_f32 v{x}, v{x}, v{a}", f"v_mul_f32 v{y}, v{y}, v{a}"]
        L += cmul(lr, cr, x)
        return L

    def table_write(k):
        lr = RAW + 2 * k
        return [(f"ds_write_b64 v{aTw}, v[{lr}:{lr+1}] offset:{tab(k, 0)}", "ex"), DONE(("tabw", k))]

    spins = []

    def spin_check(name, loads, check):
        def f():
            em.nop(2)
            em.raw(f"  s_cbranch_vccnz SPIN_{name}")
            em.label(f"BACK_{name}")
            em.pos += 1
        spins.append((name, loads, check))
        return list(check) + [f]

    tabbar = {}

    def bump(sr):
        def f():
            em.op(f"s_add_u32 s{sr}, s{sr}, 4096")
            em.op(f"s_addc_u32 s{sr+1}, s{sr+1}, 0")
        return f

    def early(k):
        acc = SETS[k % 3]
        pre = PRE[k % 2]
        RE = [acc + j for j in range(8)]
        IM = [acc + 8 + j for j in range(8)]
        t = TA
        L = [f"ds_read_b64 v[{t+8}:{t+9}], v{aCSr}"]
        if k == 0:
            L += [f"ds_read_b128 v[{t}:{t+3}], v{aSr}", f"ds_read_b128 v[{t+4}:{t+7}], v{aSr} offset:16", GAP(1)]
            sd = PRE[0]
            L += stats_finalize(t, sd, vr=t + 4)
            L += [f"v_mov_b32 v{vNeg}, v{sd}", f"ds_write_b32 v{aRw}, v{t+4}"]
        L += [f"ds_read_b128 v[{t}:{t+3}], v{aRT}", f"ds_read_b128 v[{t+4}:{t+7}], v{aRT} offset:16"]
        if k > 0:
            L += [GAP(1)]
        L += hilo(t + 8, t + 8) + [f"v_mov_b32 v{t+9}, 0"]
        L += [WAIT_SLOT(36 * (k + 1))]
        L += [f"v_mfma_f32_32x32x8_bf16 v[{acc}:{acc+15}], v[{vNeg}:{vNeg+1}], v[{t+8}:{t+9}], v[{acc}:{acc+15}]",
              DONE(("corr", k)), UNTIL(lambda: k in tabbar),
              f"ds_read_b64 v[{t+10}:{t+11}], v{aT0} offset:{tab(k, 0)}", GAP(1)]
        for j in range(8):
            L += [f"v_permlane16_swap_b32 v{acc+j}, v{acc+8+j}"]
        for j in range(8):
            L += [f"v_mul_f32 v{RE[j]}, v{t+j}, v{RE[j]}", f"v_mul_f32 v{IM[j]}, v{t+j}, v{IM[j]}"]
        lam = t + 10
        l8, l16, k2 = t + 4, t + 6, t + 8
        L += [f"ds_read_b64 v[{l8}:{l8+1}], v{aT0} offset:{tab(k, 5)}",
              f"ds_read_b64 v[{l16}:{l16+1}], v{aT0} offset:{tab(k, 6)}",
              f"ds_read_b64 v[{k2}:{k2+1}], v{aTs} offset:{tab(k, 2)}"]
        er, ei = RE[0], IM[0]
        for j in range(1, 8):
            n = t + 2 * (j % 2)
            L += [f"v_fma_f32 v{n}, v{lam}, v{er}, v{RE[j]}", f"v_fma_f32 v{n+1}, v{lam}, v{ei}, v{IM[j]}",
                  f"v_fma_f32 v{n}, -v{lam+1}, v{ei}, v{n}", f"v_fmac_f32 v{n+1}, v{lam+1}, v{er}"]
            er, ei = n, n + 1
        x, y = t + 2, t
        L += [f"v_mov_b32 v{y}, v{x}", f"v_mov_b32 v{y+1}, v{x+1}",
              f"v_permlane32_swap_b32 v{x}, v{y}", f"v_permlane32_swap_b32 v{x+1}, v{y+1}"]
        L += cfma(y, l8, x)
        L += [UNTIL(lambda: k < 2 or ("h", k - 2) in F.done)]
        if k == 1:
            L += [UNTIL(lambda: ("tabw", 4) in F.done)]
        L += [f"v_cndmask_b32 v{pre}, 0, v{x}, s[{sHI}:{sHI+1}]", f"v_cndmask_b32 v{pre+1}, 0, v{x+1}, s[{sHI}:{sHI+1}]"]
        L += [f"v_mov_b32 v{x}, v{y}", f"v_mov_b32 v{x+1}, v{y+1}",
              f"v_permlane16_swap_b32 v{y}, v{x}", f"v_permlane16_swap_b32 v{y+1}, v{x+1}"]
        L += cfma(x, l16, y)

        def exw():
            em.op("s_mov_b64 exec, 0xffff")
            em.op(f"ds_write_b64 v{aG}, v[{x}:{x+1}] offset:{EX-TAB+768}", tag="ex")
            em.op("s_mov_b64 exec, -1")
        L += [exw]
        L += cfma(pre, k2, y)
        l32, zs = t + 10, t
        L += [f"ds_read_b64 v[{l32}:{l32+1}], v{aT0} offset:{tab(k, 13)}",
              f"ds_read_b64 v[{zs}:{zs+1}], v{aTs} offset:{tab(k, 4)}", DONE(("e1", k)), BAR()]
        e3, e2, e1 = t + 4, t + 6, t + 8
        L += [(f"ds_read_b64 v[{e3}:{e3+1}], v{aG} offset:{EX-TAB}", "hr"),
              (f"ds_read_b64 v[{e2}:{e2+1}], v{aG} offset:{EX-TAB+256}", "hr"),
              (f"ds_read_b64 v[{e1}:{e1+1}], v{aG} offset:{EX-TAB+512}", "hr"), GAP(1)]
        L += cfma(e2, l32, e3) + cfma(e1, l32, e2) + cfma(x, l32, e1)
        L += [f"v_min_u32 v{x}, -2, v{x}",
              (f"buffer_store_dwordx2 v[{x}:{x+1}], v{aTs}, s[{SRD_E}:{SRD_E+3}], 0 offen sc1", "pub"),
              bump(SRD_E), DONE(("pub", k))]
        L += cfma(pre, zs, e1)
        L += [DONE(("e2", k))]
        return L

    POLL = cfg.get("poll", [44, 44, 44, 46, 56])
    PLAT = cfg.get("plat", 9)
    imgfree = {0: True, 1: True}

    def late(k):
        acc = SETS[k % 3]
        pre = PRE[k % 2]
        RE = [acc + j for j in range(8)]
        IM = [acc + 8 + j for j in range(8)]
        L = [UNTIL(lambda: ("e1", k) in F.done), f"ds_read_b64 v[{K1}:{K1+1}], v{aT0} offset:{tab(k, 8)}",
             f"ds_read_b64 v[{PD[0]}:{PD[0]+1}], v{aTs} offset:{tab(k, 8)}",
             f"ds_read_b64 v[{PD[1]}:{PD[1]+1}], v{aG} offset:{tab(k, 12)}", GAP(1)]
        L += cmul(K2, PD[0], PD[1])
        cm = []
        for j in range(8):
            cm += cmul_ip(RE[j], IM[j], K1, KT)
        cm += [UNTIL(lambda: ("e2", k) in F.done)]
        cm += cmul_ip(pre, pre + 1, K1, KT)
        cm += [f"ds_read_b64 v[{K1}:{K1+1}], v{aT0} offset:{tab(k, 1)}"]
        if k == 0:
            ld = [f"buffer_load_dword v{PD[0]}, off, s[{SRD_D}:{SRD_D+3}], s{sDB} sc1"]
            L += ld + cm + [WAIT_SLOT(36 + POLL[0] - 2)]
            cm = []
            L += spin_check("c", ld, [f"v_and_b32 v{PD[0]}, s{sMASK}, v{PD[0]}", f"v_cmp_ne_u32 vcc, s{sMASK}, v{PD[0]}"])
        L += [WAIT_SLOT(36 * (k + 1) + POLL[k])]
        ld = [f"buffer_load_dwordx2 v[{PD[i]}:{PD[i]+1}], v{aTs}, s[{SRD_F}:{SRD_F+3}], 0 offen offset:{1024*i} sc1"
              for i in (3, 2, 1, 0)]
        L += [lambda: [em.op(x) for x in ld]] + [DONE(("poll", k))] + cm + [WAIT_SLOT(36 * (k + 1) + POLL[k] + PLAT), DONE(("chk", k))]
        L += spin_check(f"p{k}", ld, [f"v_max3_u32 v{KT}, v{PD[0]}, v{PD[1]}, v{PD[2]}", f"v_max_u32 v{KT}, v{KT}, v{PD[3]}",
                                      f"v_cmp_eq_u32 vcc, -1, v{KT}"])
        L += [bump(SRD_F)]
        L += cfma(PD[2], K1, PD[3])
        zs = PD[3]
        L += [f"ds_read_b64 v[{zs}:{zs+1}], v{aTs} offset:{tab(k, 4)}"]
        L += cfma(PD[1], K1, PD[2]) + cfma(PD[0], K1, PD[1])
        L += [f"ds_read_b64 v[{K1}:{K1+1}], v{aT0} offset:{tab(k, 0)}"]
        s = PD[1]
        L += cmul(s, K2, PD[0])
        L += [f"v_permlane32_swap_b32 v{s}, v{s+1}", f"v_add_f32 v{s}, v{s}, v{s+1}", f"v_mov_b32 v{s+1}, v{s}",
              f"v_permlane16_swap_b32 v{s}, v{s+1}", f"v_add_f32 v{s}, v{s}, v{s+1}", f"v_mov_b32 v{s+1}, v{s}",
              f"v_permlane32_swap_b32 v{s}, v{s+1}"]
        L += [f"v_xor_b32 v{KT}, 0x80000000, v{K1+1}"]
        L += cfma(pre, zs, s)
        hr, hi = pre, pre + 1
        for j in range(8):
            L += [f"v_fmac_f32 v{RE[j]}, v{K1}, v{hr}", f"v_fmac_f32 v{IM[j]}, v{K1}, v{hi}",
                  f"v_fmac_f32 v{RE[j]}, v{KT}, v{hi}", f"v_fmac_f32 v{IM[j]}, v{K1+1}, v{hr}"]
            hr, hi = RE[j], IM[j]
            if j % 2 == 1:
                L += [f"v_cvt_pk_bf16_f32 v{PD[0]+j//2}, v{RE[j-1]}, v{RE[j]}",
                      f"v_cvt_pk_bf16_f32 v{PD[2]+j//2}, -v{IM[j-1]}, -v{IM[j]}"]
        L += [DONE(("h", k)), UNTIL(lambda: imgfree[k % 2])]

        def mark():
            imgfree[k % 2] = False
        L += [(f"ds_write_b128 v{aIM}, v[{PD[0]}:{PD[0]+3}] offset:{16384*(k%2)}", "hx"),
              (f"ds_write_b128 v{aIM}, v[{PD[2]}:{PD[2]+3}] offset:{16384*(k%2)+1024}", "hx"),
              UNTIL(lambda: mark() or True), DONE(("hw", k))]
        return L

    for k in range(5):
        Q2.add(table_job(k))
        if k == 0:
            Q2.add(table_write(0))
    Q2.add([UNTIL(lambda: lastbar[0] >= 9)])
    for k in range(1, 5):
        Q2.add(table_write(k))
    for k in range(5):
        Q2.add(late(k))

    def s2addr():
        return [f"v_mbcnt_lo_u32_b32 v{TA}, -1, 0", f"v_mbcnt_hi_u32_b32 v{TA}, -1, v{TA}",
                f"s_lshl_b32 s{sT4}, s{sHF}, 11", f"v_lshl_add_u32 v{vP}, v{TA}, 4, s{sT4}",
                f"v_and_b32 v{TA+1}, 31, v{TA}", f"s_lshl_b32 s{sT4}, s{sHF}, 10",
                f"v_lshl_add_u32 v{TA+1}, v{TA+1}, 5, s{sT4}", f"v_lshrrev_b32 v{TA+2}, 5, v{TA}",
                f"v_lshl_add_u32 v{aC4}, v{TA+2}, 4, v{TA+1}",
                f"s_and_b32 s{sT4}, s{sW}, 1", f"s_lshl_b32 s{sT4}, s{sT4}, 5",
                f"v_lshrrev_b32 v{TA+1}, 1, v{TA}", f"v_add_u32 v{TA+1}, s{sT4}, v{TA+1}",
                f"v_mul_u32_u24 v{TA+1}, 0x480, v{TA+1}", f"v_and_b32 v{TA+2}, 1, v{TA}",
                f"v_lshl_add_u32 v{vL4}, v{TA+2}, 4, v{TA+1}", DONE("s2addr")]

    def Hreg(P, c, kap):
        if P == 0:
            return HA + 16 * c + 4 * kap
        if P == 1:
            return (HB0 if kap < 2 else SETS[2]) + 8 * c + 4 * (kap % 2)
        return HC + 4 * c
    acc2 = {dp: ACC2 + 16 * dp for dp in range(6)}
    acc2[6], acc2[7], acc2[8] = SETS[0], SETS[1], ACC2

    steps = []
    for sig, sl in enumerate(slots):
        if sl[0] == "S1":
            steps += [dict(ph="A", sig=sig, k=sl[1], kb=sl[2], b=b) for b in range(4)]
        elif sl[0] == "AB":
            steps += [dict(ph="B", sig=sig, dp=sl[1], P=sl[2], c=sl[3], b=b) for b in range(4)]
        else:
            steps += [dict(ph="B", sig=sig, dp=2 * sl[1] + i // 2, P=2, c=i % 2, b=i) for i in range(4 if sl[1] < 4 else 2)]
    N = len(steps)

    def epilogue(dp, i):
        acc = acc2[dp]
        stg = STG[i % 2]

        def st(h):
            def f():
                t = ts.get()
                em.op(f"s_mov_b32 s{t}, {4096*dp+1024*h}")
                em.op(f"buffer_store_dwordx4 v[{stg+4*h}:{stg+4*h+3}], v{vP}, s[{SRD_P}:{SRD_P+3}], s{t} offen {STMOD}", tag="st")
            return f
        cv = [f"v_cvt_pk_bf16_f32 v{stg+j}, v{acc+2*j}, v{acc+2*j+1}" for j in range(8)]
        g = cfg.get("stgapS", 1)
        return [GAP(0 if len(Q1.q) > 4 else 2)] + cv[:4] + [st(0), GAP(g)] + cv[4:] + [DONE(("ep", dp)), st(1), GAP(g)]

    pat = cfg.get("barpat", [0, 3, 5, 7])
    bars = list(range(0, 10)) + [s for s in range(10, 55) if s % 9 in pat] + list(range(57, NSIG, 3))
    if 10 not in bars:
        bars = sorted(bars + [10])
    hread = {}
    pend_rd = []

    def h_reads(P, kaps):
        for kap in kaps:
            for c in range(2):
                r = Hreg(P, c, kap)
                off = 16384 * (kap >> 1) + 2048 * (kap & 1) + 1024 * c
                k = 2 * P + (kap >> 1)
                pend_rd.append((k, f"ds_read_b64_tr_b16 v[{r}:{r+1}], v{aH} offset:{off}"))
                pend_rd.append((k, f"ds_read_b64_tr_b16 v[{r+2}:{r+3}], v{aH} offset:{off+256}"))

    def barrier_event(sg):
        i = bars.index(sg)
        nx = bars[i + 1] if i + 1 < len(bars) else NSIG
        while DQ and DQ[0][1] < nx:
            assert DQ[0][0] <= lastbar[0]
            dma_issue(1)
        if sg == 9:
            F.need(("tabw", 0))
        F.barrier()
        em.wait_lg_tag(["cs", "hx", "hr", "ex"])
        em.wait_tag([("sig", s) for s in range(sg, nx)])
        em.barrier()
        lastbar[0] = sg
        if cfg.get("stamps") and (sg in cfg["stS"] if "stS" in cfg else (sg % 9 in (0, 5) or sg > 56)):
            SP.stamp(f"bar{sg}")
        for k in range(5):
            if ("tabw", k) in F.done and k not in tabbar:
                tabbar[k] = sg
            if hread.get(k) == "issued" and not any(x[0] == k for x in pend_rd):
                hread[k] = "done"
                imgfree[k % 2] = True
            if ("hw", k) in F.done and k not in hread:
                hread[k] = "ready"
        if sg % 9 == 0 and 9 <= sg <= 45:
            Q1.add(early(sg // 9 - 1))
            if sg == 45:
                Q1.add(s2addr())
        if sg == N1:
            em.wait_tag("clean")
            em.op("s_mov_b64 exec, 1")
            em.op(f"buffer_atomic_or v{vFb}, v{vFo}, s[{SRD_D}:{SRD_D+3}], 0 offen sc1")
            em.op("s_mov_b64 exec, -1")

    def reads(m):
        st = steps[m]
        bf = BUF + 4 * (m % NBUF)
        if m == 180:
            em.op(f"s_lshl_b32 s40, s{sPI}, 5")
            for b in range(4):
                em.op(f"v_xor_b32 v{aW+b}, s40, v{aW+b}")
        if st["ph"] == "A" and st["k"] == 0:
            off = AQ.imm(triple(st["kb"]), 16384)
            em.op(f"ds_read_b128 v[{Q+4*m}:{Q+4*m+3}], v{aQ+st['b']} offset:{off}")
        if st["ph"] == "B" and st["P"] == 2:
            off = AC4.imm(pos_addr(st["sig"])) + 2048 * st["b"]
            em.op(f"ds_read_b128 v[{bf}:{bf+3}], v{aC4} offset:{off}")
        else:
            off = AW.imm(pos_addr(st["sig"]))
            em.op(f"ds_read_b128 v[{bf}:{bf+3}], v{aW+st['b']} offset:{off}")

    nep = [0]
    seen = set()
    barrier_event(0)
    for n in range(-D, N):
        m = n + D
        if n >= 0:
            st = steps[n]
            bf = BUF + 4 * (n % NBUF)
            if st["ph"] == "A":
                k = st["k"]
                acc = SETS[k % 3]
                first = (st["kb"] == 0 and st["b"] == 0)
                if first and k >= 3:
                    F.need(("h", k - 3))
                if first and k == 2:
                    F.need(("tabw", 4))
                q = Q + 16 * st["kb"] + 4 * st["b"]
                c = "0" if first else f"v[{acc}:{acc+15}]"
                em.op(f"v_mfma_f32_32x32x16_bf16 v[{acc}:{acc+15}], v[{q}:{q+3}], v[{bf}:{bf+3}], {c}")
                if st["b"] == 0:
                    c = "0" if st["kb"] == 0 else f"v[{vCSa}:{vCSa+3}]"
                    em.op(f"v_mfma_f32_16x16x32_bf16 v[{vCSa}:{vCSa+3}], v[{SEL}:{SEL+3}], v[{bf}:{bf+3}], {c}")
            else:
                dp, P = st["dp"], st["P"]
                acc = acc2[dp]
                first = dp not in seen
                seen.add(dp)
                for k in ((0, 1), (2, 3), (4,))[P]:
                    assert hread.get(k) in ("issued", "done"), (n, k, hread, F.qs[0].log)
                while any(x[0] // 2 == P for x in pend_rd):
                    print("   forced H read at", n)
                    em.op(pend_rd.pop(0)[1], tag="hr")
                if first and dp == 8:
                    F.need(("ep", 0))
                hr = Hreg(P, st["c"], st["b"])
                c = "0" if first else f"v[{acc}:{acc+15}]"
                em.op(f"v_mfma_f32_32x32x16_bf16 v[{acc}:{acc+15}], v[{hr}:{hr+3}], v[{bf}:{bf+3}], {c}")
            F.set_cur(n + 1)
            if st["ph"] == "B" and P == 2 and st["c"] == 1:
                Q1.add(epilogue(dp, nep[0]))
                nep[0] += 1
        if m < N:
            reads(m)
        if n >= 0 and st["ph"] == "A":
            if st["k"] == 0 and st["b"] < 2:
                for r in range(4):
                    em.op(f"v_dot2c_f32_bf16 v{vST}, s{sONES}, v{q+r}")
                    em.op(f"v_dot2c_f32_bf16 v{vST+1}, v{q+r}, v{q+r}")
            if n == cfg.get("pfS", 38):
                t = SETS[2] + 10
                F.need(("tabw", 4))
                em.op(f"v_mbcnt_lo_u32_b32 v{t}, -1, 0")
                em.op(f"v_mbcnt_hi_u32_b32 v{t}, -1, v{t}")
                em.op(f"v_lshrrev_b32 v{t+1}, 3, v{t}")
                em.op(f"v_mul_u32_u24 v{t+1}, 0x480, v{t+1}")
                em.op(f"v_and_b32 v{t}, 7, v{t}")
                em.op(f"v_lshlrev_b32 v{t+2}, 6, v{t}")
                em.op(f"s_mul_i32 s40, s{sQ}, 224")
                em.op("s_sub_u32 s40, 1024, s40")
                em.op(f"v_cmp_gt_u32 vcc, 4, v{t}")
                em.op(f"v_mov_b32 v{t}, s40")
                em.op(f"v_cndmask_b32 v{t}, v{t}, v{t+2}, vcc")
                em.op(f"v_add_u32 v{t}, v{t}, v{t+1}")
                em.op(f"s_and_b32 s40, s{sRB}, 7")
                em.op(f"s_mul_i32 s40, s40, {64*1152}")
                em.op(f"s_mov_b32 s41, {8*64*1152}")
                em.op(f"buffer_load_dword v{t+1}, v{t}, s[{SRD_B}:{SRD_B+3}], s40 offen")
                em.op(f"buffer_load_dword v{t+2}, v{t}, s[{SRD_C}:{SRD_C+3}], s40 offen")
                em.op(f"buffer_load_dword v{t+3}, v{t}, s[{SRD_B}:{SRD_B+3}], s41 offen")
                em.op(f"buffer_load_dword v{t+4}, v{t}, s[{SRD_C}:{SRD_C+3}], s41 offen")
            if n % 36 == 33:
                em.op(f"ds_write_b32 v{aCSw}, v{vCSa}", tag="cs")
                if n == 33:
                    em.op(f"ds_write_b64 v{aSw}, v[{vST}:{vST+1}]", tag="cs")
        if (m + 1) % 4 == 0 and (m + 1) // 4 in bars:
            barrier_event((m + 1) // 4)
            if n >= 33:
                F.tick(0.4)
                continue
        if n < 0:
            continue
        nd = dma_issue(2 if n < 40 else 1)
        if not pend_rd:
            for k in range(5):
                if hread.get(k) == "ready":
                    ok = {0: n >= 152, 1: n >= 152, 2: n >= 180, 3: n >= 180 and ("h", 2) in F.done, 4: n >= 180}[k]
                    if ok:
                        h_reads(k // 2, [0] if k == 4 else [2 * (k % 2), 2 * (k % 2) + 1])
                        hread[k] = "issued"
                        F.qs[0].log.append((("hread", k), n))
                    break
        if pend_rd:
            em.op(pend_rd.pop(0)[1], tag="hr")
        F.tick(cfg.get("dmascale", 0.7) if nd else 1.0)
    F.flush()
    SP.stamp("endc")
    em.waitcnt(vm=0)
    SP.stamp("end")
    if SP.on:
        em.op("v_writelane_b32 v3, s89, 63")
    SP.dump()
    em.op("s_endpgm")
    print("ssm log:", F.qs[0].log)
    for name, loads, check in spins:
        em.label(f"SPIN_{name}")
        em.raw("  s_add_u32 s89, s89, 1")
        em.raw(f"  s_cmp_gt_u32 s89, {cfg.get('spinmax', 200000)}")
        em.raw(f"  s_cbranch_scc1 BACK_{name}")
        em.raw("  s_sleep 2")
        for l in loads:
            em.raw("  " + l)
        em.raw("  s_waitcnt vmcnt(0)")
        for c in check:
            em.raw("  " + c)
        em.raw("  s_nop 4")
        em.raw(f"  s_cbranch_vccnz SPIN_{name}")
        em.raw(f"  s_branch BACK_{name}")
```

```python
from common import *

GRID, BLOCK, VGPRS = 256, 576, 112


def k2(cfg):
    em = Emitter()
    em.raw(".globl k2_kernel\n.p2align 8\n.type k2_kernel,@function\nk2_kernel:")
    em.op(f"s_cmp_ge_u32 s2, {GRID}")
    em.op("s_cbranch_scc1 K2_END")
    em.raw("  s_load_dwordx2 s[48:49], s[0:1], 0")
    em.raw("  s_load_dwordx2 s[50:51], s[0:1], 64")
    em.raw("  s_load_dwordx4 s[52:55], s[0:1], 104")
    em.raw("  s_load_dwordx2 s[56:57], s[0:1], 128")
    if cfg.get("stamps"):
        em.raw("  s_memrealtime s[84:85]")
    em.op("v_lshrrev_b32 v1, 6, v0")
    em.op("v_and_b32 v0, 63, v0")
    em.op("v_readfirstlane_b32 s3, v1")
    em.op("s_and_b32 s4, s2, 3")
    em.op("s_mul_i32 s4, s4, 9")
    em.op("s_add_u32 s4, s4, s3")
    em.op("s_lshr_b32 s5, s2, 2")
    em.op("s_lshr_b32 s6, s5, 2")
    em.op("s_mul_i32 s6, s6, 60")
    em.op("s_add_u32 s6, s6, s5")
    em.op("s_mul_i32 s6, s6, 36")
    em.op("s_add_u32 s6, s6, s4")
    em.op("s_lshl_b32 s6, s6, 10")
    em.op("s_and_b32 s7, s4, 1")
    em.op("s_lshl_b32 s40, s5, 1")
    em.op("s_add_u32 s7, s7, s40")
    em.op("s_lshl_b32 s7, s7, 4")
    em.op("s_lshr_b32 s4, s4, 1")
    em.op("s_lshl_b32 s4, s4, 5")
    em.op("s_mul_i32 s40, s7, 576")
    em.op("s_add_u32 s40, s40, s4")
    em.op("s_lshl_b32 s41, s40, 1")
    em.op("s_lshl_b32 s42, s40, 2")
    em.op("s_lshl_b32 s43, s7, 2")
    em.op(f"s_add_u32 s43, s43, {WS_STATS}")
    em.op("s_lshl_b32 s44, s4, 1")
    vP, vX, vO, vS, vC = 1, 2, 3, 4, 5
    em.op(f"v_lshlrev_b32 v{vP}, 4, v0")
    em.op("v_lshrrev_b32 v6, 5, v0")
    em.op("v_and_b32 v7, 31, v0")
    em.op(f"v_lshlrev_b32 v{vC}, 1, v7")
    em.op(f"v_mul_u32_u24 v{vX}, {4*1152}, v6")
    em.op(f"v_add_u32 v{vX}, v{vX}, v{vC}")
    em.op(f"v_lshlrev_b32 v{vO}, 1, v{vX}")
    em.op(f"v_lshlrev_b32 v{vS}, 4, v6")
    for j in range(1, 16):
        em.op(f"s_mov_b32 s{60+j}, {147456*j}")
    em.op(f"s_mov_b32 s58, {8*1152}")
    em.raw("  s_waitcnt lgkmcnt(0)")
    if cfg.get("wsoff"):
        em.op(f"s_add_u32 s56, s56, {cfg['wsoff'] << 20}")
        em.op("s_addc_u32 s57, s57, 0")
    srd(em, 8, 56, "s6", 16 * 147456)
    P = 48
    order = cfg.get("k2order", list(range(16)))
    mod = cfg.get("k2ld", "")

    def pld(j):
        em.op(f"buffer_load_dwordx4 v[{P+4*j}:{P+4*j+3}], v{vP}, s[8:11], {'s%d' % (60+j) if j else 0} offen {mod}")
    NF = cfg.get("k2first", 4)
    for j in order[:NF]:
        pld(j)
    srd(em, 12, 48, "s41", 16 * 1152)
    srd(em, 16, 56, "s43", 64)
    srd(em, 20, 50, "s44", 64)
    srd(em, 24, 52, "s44", 64)
    X, STT, vD, vB = 8, 16, 6, 7
    em.op(f"buffer_load_dwordx4 v[{STT}:{STT+3}], v{vS}, s[16:19], 0 offen")
    em.op(f"buffer_load_dwordx4 v[{STT+4}:{STT+7}], v{vS}, s[16:19], 0 offen offset:32")
    for v in range(8):
        em.op(f"buffer_load_ushort v{X+v}, v{vX}, s[12:15], {'s58' if v >= 4 else 0} offen offset:{1152*(v%4)}")
    em.op(f"buffer_load_ushort v{vD}, v{vC}, s[20:23], 0 offen")
    em.op(f"buffer_load_ushort v{vB}, v{vC}, s[24:27], 0 offen")
    for j in order[NF:]:
        pld(j)
    srd(em, 28, 54, "s42", 16 * 2304)
    for g in range(1, 4):
        em.op(f"s_mov_b32 s{32+g}, {(2*(g%2) + 8*(g//2))*2304}")
    em.op("s_mov_b32 s36, 0x3f80")
    em.op("s_mov_b32 s37, 0x3f800000")
    em.op("s_mov_b32 s38, 0xffff0000")
    AM, AS, R = 24, 32, 40
    for v in range(8):
        em.op(f"v_mov_b32 v{AM+v}, 0")

    def acc(j):
        a = AM if j < 12 else AS
        for r in range(4):
            em.op(f"v_dot2c_f32_bf16 v{a+2*r}, s36, v{P+4*j+r}")
        for r in range(4):
            em.op(f"v_dot2c_f32_bf16 v{a+2*r+1}, s37, v{P+4*j+r}")
    assert all(j < 12 for j in order[:NF])
    for j in order[:NF]:
        acc(j)
    em.op(f"v_lshlrev_b32 v{vD}, 16, v{vD}")
    em.op(f"v_lshlrev_b32 v{vB}, 16, v{vB}")
    for v in range(8):
        em.op(f"v_and_b32 v{R+v}, s38, v{STT+v}")
        em.op(f"v_lshlrev_b32 v{STT+v}, 16, v{STT+v}")
        em.op(f"v_lshlrev_b32 v{X+v}, 16, v{X+v}")
        em.op(f"v_rcp_f32 v{R+v}, v{R+v}")
        em.op(f"v_add_f32 v{STT+v}, v{STT+v}, v{X+v}")

    def rnd(src, dst):
        for v in range(0, 8, 2):
            em.op(f"v_cvt_pk_bf16_f32 v{src+v}, v{src+v}, v{src+v+1}")
        for v in range(0, 8, 2):
            em.op(f"v_and_b32 v{dst+v+1}, s38, v{src+v}")
            em.op(f"v_lshlrev_b32 v{dst+v}, 16, v{src+v}")
    rnd(STT, STT)
    for v in range(8):
        em.op(f"v_mul_f32 v{STT+v}, v{STT+v}, v{R+v}")
    rnd(STT, STT)
    for v in range(8):
        em.op(f"v_mul_f32 v{STT+v}, v{STT+v}, v{vD}")
    rnd(STT, AS)
    rest = order[NF:]
    lastm = max(i for i, j in enumerate(rest) if j < 12)
    for i, j in enumerate(rest):
        acc(j)
        if i == lastm:
            for v in range(8):
                em.op(f"v_fma_f32 v{AM+v}, v{AM+v}, v{R+v}, v{vB}")
            for v in range(8):
                em.op(f"v_mul_f32 v{R+v}, {f32(-LOG2E)}, v{AM+v}")
            for v in range(8):
                em.op(f"v_exp_f32 v{R+v}, v{R+v}")
            for v in range(8):
                em.op(f"v_add_f32 v{R+v}, 1.0, v{R+v}")
            for v in range(8):
                em.op(f"v_rcp_f32 v{R+v}, v{R+v}")
            for v in range(8):
                em.op(f"v_mul_f32 v{AM+v}, v{AM+v}, v{R+v}")
    for v in range(8):
        em.op(f"v_fmac_f32 v{X+v}, v{AM+v}, v{AS+v}")
        g = v // 2
        em.op(f"buffer_store_dword v{X+v}, v{vO}, s[28:31], {'s%d' % (32+g) if g else 0} offen offset:{2304*(v%2)} {cfg.get('k2st', '')}")
    if cfg.get("stamps"):
        em.raw("  s_memrealtime s[86:87]")
        em.waitcnt(vm=0)
        em.raw("  s_memrealtime s[88:89]")
        em.raw("  s_waitcnt lgkmcnt(0)")
        em.op("s_mul_i32 s40, s2, 9")
        em.op("s_add_u32 s40, s40, s3")
        em.op("s_lshl_b32 s40, s40, 4")
        em.op("s_add_u32 s40, s40, 0x2600000")
        srd(em, 8, 56, "s40", 16)
        em.op("v_mov_b32 v8, s84")
        em.op("v_mov_b32 v9, s86")
        em.op("v_mov_b32 v10, s88")
        em.op("v_mov_b32 v11, 0")
        em.op("buffer_store_dwordx4 v[8:11], v1, s[8:11], 0 offen")
    em.label("K2_END")
    em.op("s_endpgm")
    return em
```

```python
import struct
from emit import Emitter, Fillers, V, S

WS_P = 0
WS_STATS = 0x2400000
WS_E = 0x2410000

sW, sRG, sHF, sRB, sJ = 3, 4, 5, 6, 7
SRD_X, SRD_A, SRD_B, SRD_C, SRD_P, SRD_E, SRD_F = 8, 12, 16, 20, 24, 28, 32
sW1K, sONES, sPI = 36, 37, 38
sT0 = 40
KA = 48


def ka(i):
    return KA + 2 * i


def f32(x):
    return "0x%08x" % struct.unpack("<I", struct.pack("<f", x))[0]


class AddrSet:
    def __init__(self, em, regs, base=0):
        self.em, self.regs, self.base = em, list(regs), base

    def imm(self, addr, span=8192):
        if not (addr >= self.base and addr + span - self.base <= 65536):
            d = (addr - self.base) & 0xFFFFFFFF
            for r in self.regs:
                self.em.op(f"v_add_u32 v{r}, 0x{d:x}, v{r}")
            self.base = addr
        return addr - self.base


class TempS:
    def __init__(self, lo=sT0, n=8):
        self.lo, self.n, self.i = lo, n, 0

    def get(self):
        r = self.lo + self.i
        self.i = (self.i + 1) % self.n
        return r


def srd(em, dst, ptr, off_sgpr, nrec):
    if off_sgpr is None:
        em.op(f"s_mov_b32 s{dst}, s{ptr}")
        em.op(f"s_mov_b32 s{dst+1}, s{ptr+1}")
    else:
        em.op(f"s_add_u32 s{dst}, s{ptr}, {off_sgpr}")
        em.op(f"s_addc_u32 s{dst+1}, s{ptr+1}, 0")
    em.op(f"s_mov_b32 s{dst+2}, {nrec}")
    em.op(f"s_mov_b32 s{dst+3}, 0x00020000")


GELU_C1 = -2.0 * 0.7978845608028654 * 1.4426950408889634
GELU_C2 = GELU_C1 * 0.044715
LOG2E = 1.4426950408889634
INV2PI = 0.15915494309189535


class Stamps:
    def __init__(self, em, on):
        self.em, self.on, self.n = em, on, 0
        self.names = []

    def stamp(self, name=""):
        if not self.on:
            return
        em = self.em
        if self.n == 0:
            self.real(60)
        if self.on == 2 and self.n % 2 == 0:
            self.real(40 + self.n // 2)
        if self.on == 3:
            self.real(40 + self.n)
        em.raw("  s_memtime s[84:85]")
        em.raw("  s_waitcnt lgkmcnt(0)")
        em.lg = []
        em.pos += 2
        em.raw(f"  v_writelane_b32 v3, s84, {self.n}")
        em.pos += 1
        self.names.append(name)
        self.n += 1

    def real(self, lane):
        if not self.on:
            return
        em = self.em
        em.raw("  s_memrealtime s[84:85]")
        em.raw("  s_waitcnt lgkmcnt(0)")
        em.lg = []
        em.raw(f"  v_writelane_b32 v3, s84, {lane}")
        em.pos += 3

    def dump(self):
        if not self.on:
            return
        em = self.em
        self.real(61)
        em.op("s_lshl_b32 s40, s2, 3")
        em.op(f"s_add_u32 s40, s40, s{sW}")
        em.op("s_lshl_b32 s40, s40, 8")
        em.op("s_add_u32 s40, s40, 0x2500000")
        srd(em, 88, ka(16), "s40", 256)
        em.op("v_mbcnt_lo_u32_b32 v1, -1, 0")
        em.op("v_mbcnt_hi_u32_b32 v1, -1, v1")
        em.op("v_lshlrev_b32 v1, 2, v1")
        em.op("buffer_store_dword v3, v1, s[88:91], 0 offen")
        print("stamps:", self.names)


_cp = [0]


def code_touch(em, cfg, dst=92):
    if not cfg.get("ctouch", 1):
        return
    _cp[0] += 1
    L = f"CT_{_cp[0]}"
    em.raw("  s_getpc_b64 s[88:89]")
    em.label(L)
    em.pos += 1
    em.op(f"s_sub_u32 s88, s88, {L}-CODE_BEGIN")
    em.op("s_subb_u32 s89, s89, 0")
    em.op("s_mov_b32 s90, CODE_END-CODE_BEGIN")
    em.op("s_mov_b32 s91, 0x00020000")
    em.op("s_andn2_b32 s40, s2, 7")
    em.op(f"s_add_u32 s40, s40, s{sW}")
    em.op("s_mul_i32 s40, s40, 320")
    em.op(f"v_lshlrev_b32 v{dst}, 6, v0")
    em.op("s_mov_b64 exec, 0x1f")
    em.op(f"buffer_load_dword v{dst}, v{dst}, s[88:91], s40 offen")
    em.op("s_mov_b64 exec, -1")
```

```python
from common import *
from emit import Sched, WAIT_SLOT, GAP, DONE, RATE

RING, NPOS, HX, MISC = 0, 13, 106496, 155648
CS, ST = MISC, MISC + 2048
NBUF = 4

vX0, vX1, vW1, vW2 = 4, 5, 6, 7
aQ, aW, aBo, aBp = 8, 12, 16, 17
vK1, vK2, vBc, vAc = 18, 19, 20, 22
vCSa = 24
vOB1, aCSw, aCSr, aHXw, aHXp, vP = 1, 2, 28, 29, 30, 31
SEL = 252
BUF = 32
vST = 48
ACC = [52, 68, 196, 212]
vH3 = 84
TG = 92
TX = 100
Q = 108
STG = [228, 236]


def lane_x_addr(em):
    em.op(f"s_lshl_b32 s40, s{sW}, 4")
    em.op("v_lshrrev_b32 v101, 3, v0")
    em.op("v_add_u32 v101, s40, v101")
    em.op("v_mul_u32_u24 v101, 0x480, v101")
    em.op("v_and_b32 v102, 7, v0")
    em.op("v_lshrrev_b32 v103, 4, v0")
    em.op("v_xor_b32 v102, v102, v103")
    em.op(f"v_lshl_add_u32 v{vX0}, v102, 4, v101")
    em.op(f"v_xor_b32 v{vX1}, 64, v{vX0}")
    em.op(f"v_add_u32 v{vX1}, 0x2400, v{vX1}")


def x_dma(em, cb, dst, gi):
    def f():
        em.op(f"s_add_u32 m0, s39, {dst + 1024*gi - 128*cb}")
        em.op(f"buffer_load_dwordx4 v{(vX0, vX1)[gi]}, s[{SRD_X}:{SRD_X+3}], 0 offen offset:{128*cb} lds", tag=("sig", cb))
    return f


def q_addr(em, regs):
    em.op("v_and_b32 v101, 31, v0")
    em.op(f"s_lshl_b32 s40, s{sRG}, 5")
    em.op("v_add_u32 v102, s40, v101")
    em.op("v_bfe_u32 v101, v0, 1, 3")
    em.op("v_lshrrev_b32 v103, 5, v0")
    em.op("v_xor_b32 v101, v101, v103")
    em.op(f"s_lshl_b32 s40, s{sPI}, 1")
    em.op("v_xor_b32 v101, s40, v101")
    em.op("v_lshlrev_b32 v101, 4, v101")
    em.op(f"v_lshl_add_u32 v{regs[0]}, v102, 7, v101")
    for i in (1, 2, 3):
        em.op(f"v_xor_b32 v{regs[i]}, {32*i}, v{regs[0]}")


def stats_finalize(tx, vneg, k1=None, k2=None, vr=None, vpack=None):
    s, q, t, u = tx, tx + 1, tx + 2, tx + 3
    L = [
        f"v_add_f32 v{tx}, v{tx}, v{tx+2}",
        f"v_add_f32 v{tx+1}, v{tx+1}, v{tx+3}",
        f"v_add_f32 v{tx+4}, v{tx+4}, v{tx+6}",
        f"v_add_f32 v{tx+5}, v{tx+5}, v{tx+7}",
        f"v_add_f32 v{s}, v{tx}, v{tx+4}",
        f"v_add_f32 v{q}, v{tx+1}, v{tx+5}",
        f"v_mul_f32 v{s}, {f32(1/576)}, v{s}",
        f"v_mul_f32 v{q}, {f32(1/576)}, v{q}",
        f"v_cvt_pk_bf16_f32 v{vneg}, -v{s}, -v{s}",
        f"v_fma_f32 v{q}, -v{s}, v{s}, v{q}",
        f"v_max_f32 v{q}, 0, v{q}",
        f"v_cvt_pk_bf16_f32 v{t}, v{q}, v{q}",
        f"v_lshlrev_b32 v{t}, 16, v{t}",
        f"v_add_f32 v{t}, {f32(1e-5)}, v{t}",
        f"v_cvt_pk_bf16_f32 v{t}, v{t}, v{t}",
        f"v_lshlrev_b32 v{t}, 16, v{t}",
        f"v_sqrt_f32 v{t}, v{t}",
        f"v_cvt_pk_bf16_f32 v{vneg+1}, v{t}, 0",
        f"v_lshlrev_b32 v{t}, 16, v{vneg+1}",
    ]
    r = vr if vr is not None else u
    L += [f"v_rcp_f32 v{r}, v{t}"]
    if vpack is not None:
        L += [f"v_and_b32 v{vpack}, 0xffff, v{vneg}", f"v_or_b32 v{vpack}, v{vpack}, v{t}"]
    if k1 is not None:
        L += [
            f"v_mul_f32 v{k1}, {f32(GELU_C1)}, v{r}",
            f"v_mul_f32 v{t}, v{r}, v{r}",
            f"v_mul_f32 v{k2}, {f32(0.044715)}, v{k1}",
            f"v_mul_f32 v{k2}, v{k2}, v{t}",
        ]
    return L


def sel_setup(em, sel):
    em.op(f"v_lshrrev_b32 v{sel}, 2, v0")
    em.op(f"v_xor_b32 v{sel}, v{sel}, v0")
    em.op(f"v_bfe_u32 v{sel}, v{sel}, 2, 1")
    em.op(f"v_add_u32 v{sel}, -1, v{sel}")
    em.op(f"v_and_b32 v{sel}, s{sONES}, v{sel}")
    for i in (1, 2, 3):
        em.op(f"v_mov_b32 v{sel+i}, v{sel}")


def hilo(tx, dst):
    return [
        f"v_add_f32 v{tx}, v{tx}, v{tx+1}",
        f"v_cvt_pk_bf16_f32 v{tx+1}, v{tx}, v{tx}",
        f"v_lshlrev_b32 v{tx+1}, 16, v{tx+1}",
        f"v_sub_f32 v{tx+2}, v{tx}, v{tx+1}",
        f"v_cvt_pk_bf16_f32 v{dst}, v{tx+1}, v{tx+2}",
    ]


def gelu(acc, out, mid=None, end=None):
    ops = [lambda t, a: f"v_mul_f32 v{t}, v{a}, v{a}",
           lambda t, a: f"v_fma_f32 v{t}, v{t}, v{vK2}, v{vK1}",
           lambda t, a: f"v_mul_f32 v{t}, v{t}, v{a}",
           lambda t, a: f"v_exp_f32 v{t}, v{t}",
           lambda t, a: f"v_add_f32 v{t}, 1.0, v{t}",
           lambda t, a: f"v_rcp_f32 v{t}, v{t}",
           lambda t, a: f"v_mul_f32 v{t}, v{t}, v{a}"]
    L = []
    for s in range(16 + 7):
        e = s - 8
        if e >= 0 and e % 2 == 0:
            L.append(f"v_cvt_pk_bf16_f32 v{out+e//2}, v{TG+e%8}, v{TG+(e+1)%8}")
        if s == 16 and mid:
            L += mid
        for k in (0, 3, 1, 2, 5, 4, 6):
            e = s - k
            if 0 <= e < 16:
                L.append(ops[k](TG + e % 8, acc + e))
        if s == 21 and end:
            L += end
    return L


def triple(k):
    return [HX, HX + 24576, RING + 81920, RING + 8192, RING + 32768, RING + 57344][k % 6]


def mlp_path(em, cfg):
    D = cfg.get("D", 3)
    RA = cfg.get("rateA", 5.3)
    STMOD = cfg.get("stmod", "sc1")
    N1, N2 = cfg.get("n1", 3), cfg.get("n2", 6)
    ts = TempS()
    KILL = cfg.get("kill", [])
    SP = Stamps(em, cfg.get("stamps", False))
    SP.stamp("start")
    em.op(f"s_mul_i32 s40, s{sJ}, 768")
    em.op(f"s_sub_u32 s41, {576*9216}, s40")
    srd(em, SRD_A, ka(10), "s40", "s41")
    em.op(f"s_lshl_b32 s42, s{sW}, 3")
    em.op("v_lshrrev_b32 v101, 3, v0")
    em.op("v_add_u32 v101, s42, v101")
    em.op("v_and_b32 v102, 7, v0")
    em.op("v_bfe_u32 v103, v0, 4, 1")
    em.op("v_lshlrev_b32 v103, 2, v103")
    em.op("v_xor_b32 v102, v102, v103")
    em.op("v_lshlrev_b32 v102, 4, v102")
    em.op(f"v_mul_u32_u24 v{vW1}, 0x2400, v101")
    em.op(f"v_add_u32 v{vW1}, v{vW1}, v102")
    em.op(f"v_mul_u32_u24 v{vW2}, 0x480, v101")
    em.op(f"v_add_u32 v{vW2}, v{vW2}, v102")

    orderB = [(0, 0), (1, 0), (2, 0), (3, 0), (0, 1), (1, 1), (2, 1), (3, 1)]
    for dp in range(4, 9):
        orderB += [(dp, 0), (dp, 1)]
    NSIG = 108

    def pos_addr(sig):
        return triple(sig) + 16384 if sig < 9 else RING + 8192 * ((sig - 9) % NPOS)

    def w_dma(sig):
        if sig < 54:
            p, kb = divmod(sig, 9)
            so, v, sr = 64 * kb * 9216 + 128 * p, vW1, SRD_A
        else:
            ci, a = divmod(sig - 54, 3)
            dp, half = orderB[ci]
            so, v, sr = 64 * (3 * half + a) * 1152 + 128 * dp, vW2, SRD_B

        def f():
            if "dma" in KILL and sig >= 22:
                return
            t = ts.get()
            em.op(f"s_add_u32 m0, s{sW1K}, {pos_addr(sig)}")
            em.op(f"s_mov_b32 s{t}, {so}")
            em.op(f"buffer_load_dwordx4 v{v}, s[{sr}:{sr+3}], s{t} offen lds", tag=("sig", sig))
        return f

    DQ = []
    for kb in range(9):
        e = -1 if kb < 6 else kb - 4
        DQ += [(e, kb, x_dma(em, kb, triple(kb), 0)), (e, kb, x_dma(em, kb, triple(kb), 1)), (e, kb, w_dma(kb))]
    for sig in range(9, NSIG):
        e = -1 if sig == 9 else (5 + (sig - 10) // 3 if sig < 19 else max(10, sig - 11))
        DQ.append((e, sig, w_dma(sig)))
    lastbar = [-1]

    def dma_issue(k):
        c = 0
        while DQ and c < k and DQ[0][0] <= lastbar[0]:
            DQ.pop(0)[2]()
            c += 1
        return c

    dma_issue(3 * N1)
    code_touch(em, cfg)
    em.op(f"s_mul_i32 s40, s{sJ}, {384*1152}")
    srd(em, SRD_B, ka(12), "s40", 384 * 1152)
    em.op(f"s_mul_i32 s40, s{sJ}, 768")
    srd(em, SRD_C, ka(11), "s40", 768)
    em.op(f"s_lshl_b32 s40, s{sRB}, 4")
    em.op(f"s_add_u32 s40, s40, s{sJ}")
    em.op("s_lshl_b32 s40, s40, 2")
    em.op(f"s_add_u32 s40, s40, s{sRG}")
    em.op("s_mul_i32 s40, s40, 36864")
    srd(em, SRD_P, ka(16), "s40", 36864)
    em.op(f"s_lshl_b32 s40, s{sRB}, 9")
    em.op(f"s_lshl_b32 s41, s{sRG}, 7")
    em.op("s_add_u32 s40, s40, s41")
    em.op(f"s_add_u32 s40, s40, {WS_STATS}")
    em.op(f"s_or_b32 s41, s{sJ}, s{sHF}")
    em.op("s_cmp_eq_u32 s41, 0")
    em.op("s_cselect_b32 s41, 128, 0")
    srd(em, SRD_E, ka(16), "s40", "s41")
    q_addr(em, [aQ + i for i in range(4)])
    em.op("v_bfe_u32 v101, v0, 2, 2")
    em.op("v_lshrrev_b32 v102, 1, v101")
    em.op(f"v_xor_b32 v102, s{sHF}, v102")
    em.op("v_lshlrev_b32 v102, 6, v102")
    em.op("v_lshl_add_u32 v101, v101, 7, v102")
    em.op("v_bfe_u32 v102, v0, 4, 1")
    em.op("v_lshl_add_u32 v101, v102, 5, v101")
    em.op("v_and_b32 v102, 3, v0")
    em.op("v_lshl_add_u32 v101, v102, 3, v101")
    em.op("v_lshrrev_b32 v102, 5, v0")
    em.op("v_lshl_add_u32 v103, v102, 10, v101")
    em.op(f"s_lshl_b32 s40, s{sPI}, 11")
    em.op(f"v_add_u32 v{aW}, s40, v103")
    for b in (1, 2, 3):
        em.op(f"v_xor_b32 v{aW+b}, {2048*b}, v{aW}")
    em.op("v_lshl_add_u32 v103, v102, 9, v101")
    em.op(f"s_lshl_b32 s40, s{sHF}, 12")
    em.op(f"v_add_u32 v{aBo}, s40, v103")
    em.op(f"v_xor_b32 v{aBp}, 0x1000, v{aBo}")
    em.op("v_and_b32 v101, 31, v0")
    em.op(f"s_lshl_b32 s40, s{sHF}, 6")
    em.op("v_lshl_add_u32 v103, v101, 1, s40")
    em.op(f"v_lshl_add_u32 v{vOB1}, v102, 16, v103")
    em.op(f"s_lshl_b32 s40, s{sHF}, 9")
    em.op(f"s_add_u32 s40, s40, {CS}")
    em.op("v_lshl_add_u32 v103, v101, 4, s40")
    em.op(f"v_lshl_add_u32 v{aCSr}, v102, 3, v103")
    em.op(f"s_lshl_b32 s41, s{sRG}, 2")
    em.op(f"v_add_u32 v{aCSw}, s41, v103")
    sel_setup(em, SEL)
    em.op(f"s_mul_i32 s40, s{sW}, 6144")
    em.op(f"s_add_u32 s40, s40, {HX}")
    em.op(f"v_lshl_add_u32 v{aHXw}, v0, 4, s40")
    em.op(f"s_xor_b32 s41, s{sW}, 4")
    em.op("s_mul_i32 s41, s41, 6144")
    em.op(f"s_add_u32 s41, s41, {HX}")
    em.op(f"v_lshl_add_u32 v{aHXp}, v0, 4, s41")
    em.op(f"s_lshl_b32 s40, s{sHF}, 11")
    em.op(f"v_lshl_add_u32 v{vP}, v0, 4, s40")
    em.op(f"s_lshl_b32 s40, s{sRG}, 10")
    em.op(f"s_add_u32 s40, s40, {ST}")
    em.op("v_lshl_add_u32 v50, v101, 5, s40")
    em.op(f"s_lshl_b32 s41, s{sHF}, 4")
    em.op("v_lshl_add_u32 v51, v102, 3, v50")
    em.op("v_add_u32 v51, s41, v51")
    for r in (vST, vST + 1):
        em.op(f"v_mov_b32 v{r}, 0")
    em.op(f"buffer_load_ushort v{vAc+1}, v{vOB1}, s[{SRD_C}:{SRD_C+3}], 0 offen")

    dma_issue(3 * (N2 - N1))

    AQ = AddrSet(em, [aQ + i for i in range(4)])
    AW = AddrSet(em, [aW + i for i in range(4)])
    AB = AddrSet(em, [aBo, aBp])

    def Hreg(o, p, s):
        if p < 3:
            return 124 + (p * 2 + o) * 8 + 4 * s
        if o == 0:
            return {3: vH3, 4: 108, 5: 116}[p] + 4 * s
        return 172 + (p - 3) * 8 + 4 * s

    accB = {}
    for dp in range(9):
        accB[dp] = ACC[[0, 2, 3, 1][dp % 4]]

    steps = []
    for p in range(6):
        for kb in range(9):
            for b in range(4):
                steps.append(dict(ph="A", sig=9 * p + kb, b=b, p=p, kb=kb))
    for ci, (dp, half) in enumerate(orderB):
        for a in range(3):
            for o in range(2):
                for s in range(2):
                    steps.append(dict(ph="B", sig=54 + 3 * ci + a, dp=dp, half=half, a=a, o=o, s=s))
    N = len(steps)
    F = Sched(em)

    def corr_and_gelu(p):
        acc = ACC[p % 2]
        out = vH3 if p <= 3 else Hreg(0, p, 0)
        L = [RATE(RA + (0.9 if p == 0 else 0))]
        L += [f"ds_read_b64 v[{TG}:{TG+1}], v{aCSr}"]
        if p == 0:
            L += [f"ds_read_b128 v[{TX}:{TX+3}], v50", f"ds_read_b128 v[{TX+4}:{TX+7}], v50 offset:16"]
        L += [GAP(2)]
        L += hilo(TG, vAc)
        if p == 0:
            L += stats_finalize(TX, vBc, vK1, vK2, vpack=TX + 4)
        L += [WAIT_SLOT(36 * (p + 1))]
        L += [f"v_mfma_f32_32x32x8_bf16 v[{acc}:{acc+15}], v[{vAc}:{vAc+1}], v[{vBc}:{vBc+1}], v[{acc}:{acc+15}]"]
        if p < 5:
            L += [f"buffer_load_ushort v{vAc+1}, v{vOB1}, s[{SRD_C}:{SRD_C+3}], 0 offen offset:{128*(p+1)}"]
        if p == 0:
            L += [f"v_lshlrev_b32 v{TX+5}, 2, v0",
                  f"buffer_store_dword v{TX+4}, v{TX+5}, s[{SRD_E}:{SRD_E+3}], 0 offen sc1"]
        L += [GAP(1)]
        hx = p if p < 3 else (2 if p == 5 else None)
        mid = [(f"ds_write_b128 v{aHXw}, v[{out}:{out+3}] offset:{2048*hx}", "hx")] if hx is not None else None
        if "hx" in KILL:
            hx = mid = None
        if "gelu" in KILL:
            L += (mid or []) + [DONE(("acc", p))]
        else:
            L += gelu(acc, out, mid, [DONE(("acc", p))])
        if hx is not None:
            L += [(f"ds_write_b128 v{aHXw}, v[{out+4}:{out+7}] offset:{2048*hx+1024}", "hx")]
        L += [DONE(("gelu", p))]
        return L

    def epilogue(dp, k):
        acc = accB[dp]
        stg = STG[k % 2]
        L = [RATE(cfg.get("rateE", 2)), GAP(2)]

        def st(h):
            def f():
                t = ts.get()
                em.op(f"s_mov_b32 s{t}, {4096*dp+1024*h}")
                em.op(f"buffer_store_dwordx4 v[{stg+4*h}:{stg+4*h+3}], v{vP}, s[{SRD_P}:{SRD_P+3}], s{t} offen {STMOD}", tag="st")
            return f
        cv = [f"v_cvt_pk_bf16_f32 v{stg+i}, v{acc+2*i}, v{acc+2*i+1}" for i in range(8)]
        L += cv[:4] + [st(0)] + cv[4:] + [DONE(("ep", dp)), GAP(cfg.get("stgap", 2)), st(1)]
        return L

    bars = list(range(0, 10)) + list(range(10, NSIG, 3))

    def barrier_event(sg):
        i = bars.index(sg)
        nx = bars[i + 1] if i + 1 < len(bars) else NSIG
        while DQ and DQ[0][1] < nx:
            assert DQ[0][0] <= lastbar[0]
            dma_issue(1)
        if sg == 64:
            F.flush_until(("gelu", 5))
        em.wait_lg_tag(["cs", "hx", "hr"])
        em.wait_tag([("sig", s) for s in range(sg, nx)])
        if "bar" not in KILL or sg < 20 or sg in cfg["stA"]:
            em.barrier()
        lastbar[0] = sg
        if cfg.get("stamps") and (sg in cfg["stA"] if "stA" in cfg else (sg % 3 == 1 or sg == 0)):
            SP.stamp(f"bar{sg}")
        if sg % 9 == 1 and 10 <= sg <= 55:
            F.add(corr_and_gelu(sg // 9 - 1))
        if sg == 55:
            for p in (3, 4):
                for s in range(2):
                    r = Hreg(0, p, s)
                    pend_hx.append((f"ds_write_b128 v{aHXw}, v[{r}:{r+3}] offset:{2048*(p-3)+1024*s}", "hx"))
        if sg == 61:
            assert not pend_hx
            for p in (3, 4):
                for s in range(2):
                    r = Hreg(1, p, s)
                    pend_rd.append(f"ds_read_b128 v[{r}:{r+3}], v{aHXp} offset:{2048*(p-3)+1024*s}")
        if sg == 64:
            for s in range(2):
                r = Hreg(1, 5, s)
                pend_rd.append(f"ds_read_b128 v[{r}:{r+3}], v{aHXp} offset:{2048*2+1024*s}")

    def reads(m):
        st = steps[m]
        bf = BUF + 4 * (m % NBUF)
        if st["ph"] == "A":
            if st["p"] == 0:
                off = AQ.imm(triple(st["kb"]), 16384)
                em.op(f"ds_read_b128 v[{Q+4*m}:{Q+4*m+3}], v{aQ+st['b']} offset:{off}")
            off = AW.imm(pos_addr(st["sig"]))
            a = aW + st["b"]
            em.op(f"ds_read_b64_tr_b16 v[{bf}:{bf+1}], v{a} offset:{off}")
            em.op(f"ds_read_b64_tr_b16 v[{bf+2}:{bf+3}], v{a} offset:{off+512}")
        else:
            off = AB.imm(pos_addr(st["sig"])) + 2048 * st["s"]
            a = aBp if st["o"] else aBo
            em.op(f"ds_read_b64_tr_b16 v[{bf}:{bf+1}], v{a} offset:{off}")
            em.op(f"ds_read_b64_tr_b16 v[{bf+2}:{bf+3}], v{a} offset:{off+1024}")

    pend_hx, pend_rd = [], []
    nep = [0]
    barrier_event(0)
    for n in range(-D, N):
        m = n + D
        if n >= 0:
            st = steps[n]
            bf = BUF + 4 * (n % NBUF)
            if st["ph"] == "A":
                acc = ACC[st["p"] % 2]
                first = (st["kb"] == 0 and st["b"] == 0)
                if first and st["p"] >= 2:
                    F.flush_until(("acc", st["p"] - 2))
                q = Q + 16 * st["kb"] + 4 * st["b"]
                c = "0" if first else f"v[{acc}:{acc+15}]"
                em.op(f"v_mfma_f32_32x32x16_bf16 v[{acc}:{acc+15}], v[{bf}:{bf+3}], v[{q}:{q+3}], {c}")
                if st["b"] == 0 and "cs" not in KILL:
                    c = "0" if st["kb"] == 0 else f"v[{vCSa}:{vCSa+3}]"
                    em.op(f"v_mfma_f32_16x16x32_bf16 v[{vCSa}:{vCSa+3}], v[{SEL}:{SEL+3}], v[{bf}:{bf+3}], {c}")
            else:
                acc = accB[st["dp"]]
                first = (st["half"] == 0 and st["a"] == 0 and st["o"] == 0 and st["s"] == 0)
                if n == 216:
                    F.flush_until(("acc", 4))
                if n == 216 + 36:
                    F.flush_until(("acc", 5))
                if first and st["dp"] >= 4:
                    F.flush_until(("ep", st["dp"] - 4))
                hr = Hreg(st["o"], 3 * st["half"] + st["a"], st["s"])
                c = "0" if first else f"v[{acc}:{acc+15}]"
                em.op(f"v_mfma_f32_32x32x16_bf16 v[{acc}:{acc+15}], v[{hr}:{hr+3}], v[{bf}:{bf+3}], {c}")
                if st["half"] == 1 and st["a"] == 2 and st["o"] == 1 and st["s"] == 1:
                    F.add(epilogue(st["dp"], nep[0]))
                    nep[0] += 1
            F.cur = n + 1
        if m < N:
            reads(m)
        if (m + 1) % 4 == 0 and (m + 1) // 4 in bars:
            barrier_event((m + 1) // 4)
            if n >= 36:
                continue
        if n < 0:
            continue
        nd = dma_issue(2 if n < 40 else 1)
        if st["ph"] == "A":
            if st["p"] == 0 and st["b"] < 2:
                for r in range(4):
                    em.op(f"v_dot2c_f32_bf16 v{vST}, s{sONES}, v{q+r}")
                    em.op(f"v_dot2c_f32_bf16 v{vST+1}, v{q+r}, v{q+r}")
            if n == cfg.get("pfA", 50):
                pm = cfg.get("pfmode", 0)
                if pm == 0:
                    em.op(f"s_and_b32 s40, s{sRB}, 7")
                    em.op("s_lshl_b32 s40, s40, 3")
                    em.op(f"s_add_u32 s40, s40, s{sW}")
                    em.op("s_mul_i32 s40, s40, 6912")
                    em.op(f"v_min_u32 v{vST}, 53, v0")
                    em.op(f"v_lshlrev_b32 v{vST}, 7, v{vST}")
                    em.op(f"buffer_load_dword v{vST+1}, v{vST}, s[{SRD_B}:{SRD_B+3}], s40 offen")
                    em.op(f"buffer_load_dword v51, v{vST}, s[{SRD_B}:{SRD_B+3}], s40 offen offset:64")
                else:
                    nl, sh, sz = {1: (54, 7, 6912), 2: (54, 6, 3456), 3: (27, 7, 3456)}[pm]
                    em.op(f"s_and_b32 s40, s{sRB}, {7 if pm == 1 else 15}")
                    em.op("s_lshl_b32 s40, s40, 3")
                    em.op(f"s_add_u32 s40, s40, s{sW}")
                    em.op(f"s_mul_i32 s40, s40, {sz}")
                    em.op(f"v_min_u32 v{vST}, {nl-1}, v0")
                    em.op(f"v_lshlrev_b32 v{vST}, {sh}, v{vST}")
                    em.op(f"buffer_load_dword v{vST+1}, v{vST}, s[{SRD_B}:{SRD_B+3}], s40 offen")
            if n % 36 == 34 and ("csw" not in KILL or n == 34):
                em.op(f"ds_write_b32 v{aCSw}, v{vCSa}", tag="cs")
                if n == 34:
                    em.op(f"ds_write_b64 v51, v[{vST}:{vST+1}]", tag="cs")
            if st["p"] == 5 and n - 180 == 16:
                for k in range(12):
                    p, o, s = k // 4, (k // 2) % 2, k % 2
                    r = Hreg(o, p, s)
                    pend_rd.append(f"ds_read_b128 v[{r}:{r+3}], v{aHXp if o else aHXw} offset:{2048*p+1024*s}")
        elif pend_hx and n % 4 == 2 and ("gelu", 4) in F.done:
            it = pend_hx.pop(0)
            em.op(it[0], tag=it[1])
        if pend_rd:
            em.op(pend_rd.pop(0), tag="hr")
        F.tick(cfg.get("dmascale", 0.7) if nd else 1.0)
    F.flush()
    SP.stamp("endc")
    em.waitcnt(vm=0)
    SP.stamp("end")
    SP.dump()
    em.op("s_endpgm")
```

```python
import sys,re
src=open(sys.argv[1]).read().split('\n'); mode=sys.argv[3]
MOD=' sc0 sc1'
def idx(pred,start=0): return next(k for k in range(start,len(src)) if pred(src[k]))
s1=idx(lambda l:'buffer_store_dwordx4 v[188:191], v18' in l)
s2=idx(lambda l:'buffer_store_dwordx4 v[192:195], v18' in l)
s3=idx(lambda l:'buffer_store_dwordx4 v[196:199], v18' in l)
for k in (s1,s2,s3):
    src[k]=re.sub(r'( sc0| sc1| nt)*$','',src[k])+MOD
ins={}
rep={}
if mode=='dpp':
    i=idx(lambda l:l.strip()=='v_add3_u32 v18, v18, v176, s100')
    ins[i]=['  v_and_b32 v30, 8, v0','  v_mul_u32_u24 v30, 0x8f8, v30','  v_sub_u32 v30, v18, v30','  v_add_u32 v28, 0x4800, v30']
    rep[s1]=[]
    n=[f'  v_mov_b32 v{132+k}, v{188+k}' for k in range(4)]
    n+=[f'  v_mov_b32_dpp v{188+k}, v{192+k} row_ror:8 row_mask:0xf bank_mask:0xc' for k in range(4)]
    n.append('  buffer_store_dwordx4 v[188:191], v30, s[96:99], 0 offen offset:0'+MOD)
    n+=[f'  v_mov_b32_dpp v{192+k}, v{132+k} row_ror:8 row_mask:0xf bank_mask:0x3' for k in range(4)]
    n.append('  buffer_store_dwordx4 v[192:195], v28, s[96:99], 0 offen offset:0'+MOD)
    rep[s2]=n
if mode in('lds','lds2'):
    pre='''v_readfirstlane_b32 s90, v18
v_readfirstlane_b32 s91, v4
s_mov_b32 s101, 0x4800
v_lshrrev_b32 v48, 3, v0
v_and_b32 v49, 7, v0
v_mul_u32_u24 v182, 0x900, v48
v_lshlrev_b32 v50, 4, v49
v_add3_u32 v182, v182, v50, s90
v_xor_b32 v50, v49, v48
v_lshlrev_b32 v50, 4, v50
v_lshlrev_b32 v51, 7, v48
v_add3_u32 v183, v50, v51, s91
v_lshrrev_b32 v232, 4, v0
v_and_b32 v233, 15, v0
v_xor_b32 v50, v232, v49
v_lshlrev_b32 v50, 4, v50
v_lshlrev_b32 v51, 7, v233
v_add3_u32 v184, v50, v51, s91
v_xor_b32 v185, 64, v184'''.split('\n')
    if mode=='lds': pre+='''v_bfe_u32 v50, v0, 1, 2
v_xor_b32 v50, v50, v232
v_lshlrev_b32 v50, 4, v50
v_lshlrev_b32 v51, 6, v233
v_add3_u32 v186, v50, v51, s91
v_lshrrev_b32 v234, 2, v0
v_and_b32 v235, 3, v0
v_bfe_u32 v50, v0, 3, 2
v_xor_b32 v50, v50, v235
v_lshlrev_b32 v50, 4, v50
v_lshlrev_b32 v51, 6, v234
v_add3_u32 v187, v50, v51, s91
v_mul_u32_u24 v162, 0x900, v234
v_lshlrev_b32 v50, 4, v235
v_add3_u32 v162, v162, v50, s90'''.split('\n')
    a=idx(lambda l:'buffer_store_dwordx4 v[228:231], v5, s[24:27], s67' in l)
    a=idx(lambda l:l.strip()=='s_mov_b64 exec, -1',a)
    e=idx(lambda l:'v_cmp_gt_u32 vcc, 4, v29' in l,a)
    mf=[k for k in range(a,e) if 'v_mfma' in src[k]]
    assert 2*len(mf)>=len(pre),(len(mf),len(pre))
    for j,k in enumerate(mf):
        c=pre[2*j:2*j+2]
        if c: ins[k]=['  '+x for x in c]
    rep[s1]=['  ds_write_b128 v184, v[188:191]']
    rep[s2]=['  ds_write_b128 v185, v[192:195]','  ds_read_b128 v[32:35], v183','  ds_read_b128 v[36:39], v183 offset:1024']
    p=idx(lambda l:l.strip()=='v_mul_f32 v159, v175, v159',s2)
    ins[p]=['  s_waitcnt lgkmcnt(1)','  buffer_store_dwordx4 v[32:35], v182, s[96:99], 0 offen'+MOD,'  s_waitcnt lgkmcnt(0)','  buffer_store_dwordx4 v[36:39], v182, s[96:99], s101 offen'+MOD]
    if mode=='lds':
        rep[s3]=['  ds_write_b128 v186, v[196:199]','  ds_read_b128 v[40:43], v187','  s_waitcnt lgkmcnt(0)','  buffer_store_dwordx4 v[40:43], v162, s[96:99], s71 offen'+MOD]
out=[]
for k,l in enumerate(src):
    out+= rep[k] if k in rep else [l]
    out+= ins.get(k,[])
open(sys.argv[2],'w').write('\n'.join(out))
```

```python
import sys,re
src=open(sys.argv[1]).read().split('\n')
opts=sys.argv[3] if len(sys.argv)>3 else ''
def idx(pred,start=0): return next(k for k in range(start,len(src)) if pred(src[k]))
M='v_mfma_f32_16x16x32_bf16'
def L(a,o,so): return f'buffer_load_dwordx4 v[{a}:{a+3}], v5, s[24:27], {so} offen offset:{o} sc1'
G1=['s_add_u32 s100, s66, 8192']+[L(200+4*i,1024*i,'s100') for i in range(4)]
GR=[L(148,2048,'s66'),'s_mov_b32 exec_hi, 0',L(152,3072,'s66'),'s_mov_b32 exec_hi, -1','s_add_u32 s100, s66, 4096',L(112,1024,'s100'),L(116,2048,'s100'),L(140,0,'s66'),L(144,1024,'s66'),L(108,0,'s100')]
POLL=['s_mov_b64 exec, 0xff0','buffer_load_dword v19, v2, s[32:35], 0 offen sc1','s_mov_b64 exec, -1']
RE=[]
for i in range(4):
    RE+=[f'{M} v[220:223], v[178:181], v[{200+4*i}:{203+4*i}], v[{"164:167" if i==0 else "220:223"}]',f'{M} v[224:227], v[176:179], v[{200+4*i}:{203+4*i}], v[{"168:171" if i==0 else "224:227"}]']
ins={}; rep={}
fmt=lambda n:[x if x.endswith(':') else '  '+x for x in n]
z=idx(lambda l:'buffer_store_dwordx4 v[228:231], v5, s[24:27], s67' in l)
assert src[z+1].strip()=='s_mov_b64 exec, 0xf0' and 'buffer_load_dword v29, v2' in src[z+2]
rep[z+1]=['  s_mov_b64 exec, 0xff0']
c4=idx(lambda l:l.strip()=='s_and_b32 s73, vcc_lo, s51',z)
bar=idx(lambda l:'s_barrier' in l,c4)
got=[re.search(r'v\[(\d+):',l).group(1) for l in src[c4:bar] if 'buffer_' in l]
assert got==['148','152','112','116','140','144','108'],got
ins[c4]=fmt(['s_mov_b32 s95, s72','s_cmp_eq_u32 s72, 0','s_cbranch_scc1 SKIP_3B','v_cmp_gt_u32 vcc, 2, v29']+G1+['s_and_b32 s72, vcc_lo, 0xff0','SKIP_3B:'])
g3=idx(lambda l:'buffer_load_dwordx4 v[108:111]' in l,c4)
ins[g3]=fmt(['s_or_b32 s73, s73, s72','s_cbranch_scc0 SKIP_RP']+POLL+['SKIP_RP:'])
a=idx(lambda l:l.strip()=='s_cmp_lg_u32 s72, 0',bar)
b=idx(lambda l:l.startswith('LBACK_4:'),a)
assert b-a==5
late=['LATE_W:','s_waitcnt vmcnt(0)','v_cmp_gt_u32 vcc, 2, v19','v_cmp_gt_u32 s[90:91], 4, v19','s_nop 2','s_and_b32 vcc_lo, vcc_lo, 0xff0','s_and_b32 s90, s90, s51','s_or_b32 s90, s90, vcc_lo','s_cbranch_scc1 LATE_P','LATE_L:',
      's_cmp_eq_u32 s72, 0','s_cbranch_scc1 LATE_G']+G1+['LATE_G:']+GR
for k in range(a,b): rep[k]=[]
if 'o' in opts:
    rep[a]=fmt(['s_cmp_lg_u32 s73, 0','s_cbranch_scc1 LATE_W'])
    tail=late+['s_branch LBACK_4']
else:
    rep[a]=fmt(['s_cmp_eq_u32 s73, 0','s_cbranch_scc1 LBACK_4']+late)
    tail=[]
assert src[b+1].strip()=='s_waitcnt vmcnt(6)'
ins[b+1]=fmt(['s_cmp_eq_u32 s95, 0','s_cbranch_scc1 NO_REDO']+RE+['NO_REDO:'])
p=idx(lambda l:l.startswith('LATE_3:')); q=idx(lambda l:l.startswith('K1_SSM:'))
for k in range(p,q): rep[k]=[]
rep[p]=fmt(tail+['LATE_P:','s_add_u32 s89, s89, 1','s_cmp_gt_u32 s89, 200000','s_cbranch_scc1 LATE_L']+POLL+['s_branch LATE_W'])
out=[]
for k,l in enumerate(src):
    out+= rep[k] if k in rep else [l]
    out+= ins.get(k,[])
open(sys.argv[2],'w').write('\n'.join(out))
```
